```python
import torch

def _softmax(x, axis=-1):
    return torch.softmax(x, dim=axis)
def _gelu(x):
    return torch.nn.functional.gelu(x, approximate="tanh")
def _silu(x):
    return torch.nn.functional.silu(x)
def _sigmoid(x):
    return torch.sigmoid(x)
def _layernorm(x, axis=-1, eps=1e-5):
    m = x.mean(dim=axis, keepdim=True)
    v = x.var(dim=axis, keepdim=True, unbiased=False)
    return (x - m) / torch.sqrt(v + eps)
def _scatter_add(tgt, idx, src, axis=0):
    return tgt.clone().index_add_(axis, idx, src)
def _segment_sum(src, seg, n):
    out = torch.zeros((n,) + src.shape[1:], dtype=src.dtype)
    return out.index_add_(0, seg, src)
def _pad(x, pw):
    flat = tuple(v for pair in reversed(pw) for v in pair)
    return torch.nn.functional.pad(x, flat)

kernel_name = 'gated_mix__mha_block_cached__dense_activation_gelu__decode'

def setup_inputs():

    _w = (lambda a: (lambda t: t.to(torch.bfloat16) if t.is_floating_point() else t)(torch.as_tensor(a)))
    def _A_setup():
        B, Sq, D = 2, 1, 448
        H, Sk, Dh = 16, 4096, 256
        return {
            "x": _w((lambda *s: torch.randn(*s, dtype=torch.bfloat16) * 0.05)(B, Sq, D)),
            "k_cache": _w((lambda *s: torch.randn(*s, dtype=torch.bfloat16) * 6.4)(B, H, Sk, Dh)),
            "v_cache": _w((lambda *s: torch.randn(*s, dtype=torch.bfloat16) * 0.4)(B, H, Sk, Dh)),
            "wq": _w((lambda *s: torch.randn(*s, dtype=torch.bfloat16) * 6.4)(D, H * Dh) * (D ** -0.5)),
            "wo": _w((lambda *s: torch.randn(*s, dtype=torch.bfloat16) * 0.4)(H * Dh, D) * ((H * Dh) ** -0.5)),
        }
    _A_in = _A_setup()

    def _B_setup():
        B, S, D, F = 2, 1, 448, 1792
        return {
            "x": _w((lambda *s: torch.randn(*s, dtype=torch.bfloat16) * 0.05)(B, S, D)),
            "w1": _w((lambda *s: torch.randn(*s, dtype=torch.bfloat16) * 3.2)(D, F) * (D ** -0.5)),
            "b1": _w((lambda *s: torch.randn(*s, dtype=torch.bfloat16) * 3.2)(F) * 0.01),
            "w2": _w((lambda *s: torch.randn(*s, dtype=torch.bfloat16) * 0.4)(F, D) * (F ** -0.5)),
            "b2": _w((lambda *s: torch.randn(*s, dtype=torch.bfloat16) * 0.8)(D) * 0.01),
        }
    _B_in = _B_setup()

    return {
        "A_x": _A_in["x"],
        "A_k_cache": _A_in["k_cache"],
        "A_v_cache": _A_in["v_cache"],
        "A_wq": _A_in["wq"],
        "A_wo": _A_in["wo"],
        "B_x": _B_in["x"],
        "B_w1": _B_in["w1"],
        "B_b1": _B_in["b1"],
        "B_w2": _B_in["w2"],
        "B_b2": _B_in["b2"],
        "gate_w": _w((lambda *s: torch.randn(*s, dtype=torch.bfloat16) * 0.1)(448) * 16.0),
    }

def reference(A_x, A_k_cache, A_v_cache, A_wq, A_wo, B_x, B_w1, B_b1, B_w2, B_b2, gate_w):
    def _A_ref(x, k_cache, v_cache, wq, wo):
        B, Sq, D = x.shape
        H, Dh = 16, 256
        q = (lambda x, *d: x.permute(*d))((x @ wq).reshape(B, Sq, H, Dh), 0, 2, 1, 3)
        scores = torch.einsum("bhqd,bhkd->bhqk", q, k_cache) * (Dh ** -0.5)
        p = _softmax(scores, axis=-1)
        o = torch.einsum("bhqk,bhkd->bhqd", p, v_cache)
        return (lambda x, *d: x.permute(*d))(o, 0, 2, 1, 3).reshape(B, Sq, H * Dh) @ wo

    def _B_ref(x, w1, b1, w2, b2):
        h = torch.einsum("bsd,df->bsf", x, w1) + b1
        h = _gelu(h)
        return torch.einsum("bsf,fd->bsd", h, w2) + b2

    x = A_x
    g = _sigmoid((x * gate_w).sum(-1, keepdims=True))
    a = _A_ref(x, A_k_cache, A_v_cache, A_wq, A_wo)
    b = _B_ref(x, B_w1, B_b1, B_w2, B_b2)
    return g * a + (1 - g) * b
```

```python
import re

class Asm:
    def __init__(self):
        self.lines = []
        self.vm_issued = 0
    def __call__(self, text):
        for ln in text.strip('\n').split('\n'):
            ln = ln.strip()
            if not ln:
                continue
            self.lines.append(ln)
            op = ln.split()[0]
            if op.startswith('buffer_') or op.startswith('global_'):
                self.vm_issued += 1
    def vm_mark(self):
        return self.vm_issued - 1
    def vm_wait(self, seq, extra=''):
        n = self.vm_issued - 1 - seq
        assert n >= 0
        n = min(n, 63)
        self(f's_waitcnt vmcnt({n}){extra}')
    def label(self, name):
        self.lines.append(name + ':')
    def comment(self, text):
        self.lines.append('; ' + text)

REG_RE = re.compile(r'^(-|\|)?([vsa])(\d+)\|?$')
RNG_RE = re.compile(r'^(-|\|)?([vsa])\[(\d+):(\d+)\]\|?$')

def regs_of(tok):
    tok = tok.strip()
    m = REG_RE.match(tok)
    if m:
        return {(m.group(2), int(m.group(3)))}
    m = RNG_RE.match(tok)
    if m:
        return {(m.group(2), i) for i in range(int(m.group(3)), int(m.group(4)) + 1)}
    if tok in ('vcc', '-vcc'):
        return {('s', 'vcc_lo'), ('s', 'vcc_hi')}
    if tok in ('vcc_lo', 'vcc_hi'):
        return {('s', tok)}
    if tok == 'exec':
        return {('s', 'exec')}
    if tok in ('exec_lo', 'exec_hi'):
        return {('s', 'exec')}
    if tok == 'm0':
        return {('s', 'm0')}
    return set()

TRANS = ('v_exp_f32', 'v_log_f32', 'v_rcp_f32', 'v_rsq_f32', 'v_sqrt_f32', 'v_sin_f32', 'v_cos_f32', 'v_rcp_iflag_f32')

class Ins:
    pass

def parse(ln):
    I = Ins()
    I.text = ln
    I.kind = 'other'
    I.wr = set(); I.rd = set()
    I.ws = 1
    s = ln.split(';')[0].strip()
    if not s or s.endswith(':') or s.startswith('.'):
        I.kind = 'none'; I.ws = 0; I.op = ''
        return I
    parts = s.split(None, 1)
    op = parts[0]; I.op = op
    rest = parts[1] if len(parts) > 1 else ''
    ops = [t.strip() for t in rest.split(',')] if rest else []
    mods = ''
    if ops:
        last = ops[-1].split(None, 1)
        if len(last) > 1 and not last[0].startswith('hwreg'):
            ops[-1] = last[0]; mods = last[1]
    if 'quad_perm' in rest or 'op_sel' in rest or 'neg_lo' in rest or 'neg_hi' in rest:
        idx = min(i for i in (rest.find('quad_perm'), rest.find('op_sel'), rest.find('neg_lo'), rest.find('neg_hi')) if i >= 0)
        head = rest[:idx].strip(); mods = rest[idx:]
        ops = [t.strip() for t in head.split(',')]
        last = ops[-1].split(None, 1)
        if len(last) > 1:
            ops[-1] = last[0]; mods = last[1] + ' ' + mods
    I.ops = ops; I.mods = mods
    R = [regs_of(t) for t in ops]
    if op == 's_nop':
        I.kind = 'nop'; I.ws = int(ops[0], 0) + 1
    elif op.startswith('v_mfma') or op.startswith('v_smfmac'):
        I.kind = 'mfma'
        I.wr = R[0]; I.srcA = R[1]; I.srcB = R[2]; I.srcC = R[3] if len(R) > 3 else set()
        I.rd = I.srcA | I.srcB | I.srcC
        I.passes = 8 if ('32x32' in op or '16x16x4_f32' in op) else 4
    elif op.startswith('v_'):
        I.kind = 'valu'
        base = op.replace('_dpp', '').replace('_e32', '').replace('_e64', '').replace('_sdwa', '')
        I.base = base
        I.dpp = op.endswith('_dpp') or any(k in mods for k in ('row_', 'quad_perm', 'wave_'))
        I.trans = base in TRANS
        I.dot = base.startswith('v_dot')
        I.perml = base.startswith('v_permlane')
        I.rdlane = base in ('v_readlane_b32', 'v_readfirstlane_b32')
        if I.perml and 'swap' in base:
            I.wr = R[0] | R[1]; I.rd = R[0] | R[1]
        elif base.startswith('v_cmpx'):
            I.wr = {('s', 'exec')} | (R[0] if ops[0] != 'exec' else set()); I.rd = set().union(*R[1:])
        elif base in ('v_add_co_u32', 'v_sub_co_u32', 'v_addc_co_u32', 'v_subb_co_u32', 'v_subrev_co_u32'):
            I.wr = R[0] | R[1]; I.rd = set().union(*R[2:])
        else:
            I.wr = R[0]; I.rd = set().union(*R[1:]) if len(R) > 1 else set()
            if base.startswith(('v_fmac', 'v_mac', 'v_dot2c', 'v_dot4c', 'v_pk_fmac')) or I.dpp or base in ('v_writelane_b32',):
                I.rd = I.rd | R[0]
            if base == 'v_cndmask_b32' and len(ops) == 3:
                I.rd = I.rd | regs_of('vcc')
        I.rd = I.rd | {('s', 'exec_impl')}
    elif op.startswith('buffer_') or op.startswith('global_'):
        I.kind = 'vmem'
        I.store = ('store' in op) or ('atomic' in op)
        I.wide = ('x3' in op or 'x4' in op) and 'store' in op
        if op.startswith(('buffer_wbl2', 'buffer_inv')):
            pass
        elif 'lds' in mods.split() or '_lds_' in op:
            I.rd = set().union(*R) | {('s', 'm0')}
        elif I.store:
            I.rd = set().union(*R)
            I.data = R[0] if op.startswith('buffer_') else R[1]
            if 'atomic' in op and 'sc0' in mods.split():
                I.wr = R[0]
        else:
            I.wr = R[0]; I.rd = set().union(*R[1:])
    elif op.startswith('ds_'):
        I.kind = 'ds'
        if op.startswith(('ds_read', 'ds_bpermute', 'ds_permute', 'ds_swizzle')):
            I.wr = R[0]; I.rd = set().union(*R[1:])
        else:
            I.rd = set().union(*R)
    elif op.startswith('s_'):
        I.kind = 'salu'
        if op.startswith(('s_cmp', 's_cbranch', 's_branch', 's_waitcnt', 's_barrier', 's_endpgm', 's_sleep', 's_setprio', 's_bitcmp')):
            I.rd = set().union(*R) if R else set()
        else:
            I.wr = R[0] if R else set(); I.rd = set().union(*R[1:]) if len(R) > 1 else set()
            if 'saveexec' in op:
                I.wr = I.wr | {('s', 'exec')}
    return I

def isv(r): return r[0] in ('v', 'a')
def iss(r): return r[0] == 's'

def need(p, c):
    n = 0
    pk, ck = p.kind, c.kind
    if pk == 'valu':
        vw = {r for r in p.wr if isv(r)}
        sw = {r for r in p.wr if iss(r)}
        if vw:
            if ck == 'mfma' and vw & c.rd: n = max(n, 2)
            if ck == 'valu':
                if c.dpp and vw & c.rd: n = max(n, 2)
                if c.perml and vw & c.rd: n = max(n, 2)
                if c.rdlane and vw & c.rd: n = max(n, 1)
                if p.trans and vw & c.rd: n = max(n, 1)
                if p.dot and vw & (c.rd | c.wr):
                    same = (c.base == p.base)
                    if same:
                        ab = set()
                        srcs = [regs_of(t) for t in c.ops[1:3]]
                        for s_ in srcs: ab |= s_
                        if vw & ab: n = max(n, 3)
                    else:
                        n = max(n, 3)
            if p.dot and ck in ('mfma', 'vmem', 'ds') and vw & c.rd: n = max(n, 3)
            if p.trans and ck in ('vmem', 'ds', 'mfma') and vw & c.rd: n = max(n, 2)
        if sw:
            if ('s', 'exec') in sw:
                if ck == 'valu' and (c.dpp): n = max(n, 5)
                if ck == 'valu' and (c.rdlane or c.perml or c.base == 'v_writelane_b32'): n = max(n, 4)
                if ck == 'mfma': n = max(n, 4)
                if ck == 'valu' and ('s', 'exec') in c.rd: n = max(n, 2)
            sw2 = sw - {('s', 'exec')}
            if ck == 'valu' and sw2 & c.rd:
                n = max(n, 4 if (c.rdlane or c.base == 'v_writelane_b32') else 2)
            if ck == 'mfma' and sw2 & c.rd: n = max(n, 2)
            if ck == 'vmem' and sw & c.rd: n = max(n, 5)
            if ck == 'ds' and sw & c.rd: n = max(n, 5)
    if pk == 'mfma':
        d = p.wr
        tab = {4: (0, 6, 8, 3), 8: (0, 10, 12, 7)}[p.passes]
        if ck == 'mfma':
            if c.srcC & d:
                if c.srcC == d and c.passes == p.passes: n = max(n, tab[0])
                else: n = max(n, tab[1])
            if (c.srcA | c.srcB) & d: n = max(n, tab[2])
            if c.wr & d and not (c.srcC == d): n = max(n, tab[2])
        elif ck in ('valu', 'vmem', 'ds'):
            if d & (c.rd | c.wr): n = max(n, tab[2])
            if ck == 'valu' and (p.srcC & c.wr): n = max(n, tab[3])
    if pk == 'vmem' and getattr(p, 'wide', False):
        if ck in ('valu', 'mfma') and p.data & c.wr: n = max(n, 2)
        elif ck in ('vmem', 'ds') and p.data & c.wr: n = max(n, 1)
    if pk == 'salu':
        if ('s', 'm0') in p.wr and ck == 'vmem' and ('s', 'm0') in c.rd: n = max(n, 1)
        if ('s', 'exec') in p.wr and ck == 'valu' and (c.dpp or c.perml or c.rdlane): n = max(n, 1)
    return n

def pad(lines, verbose=False):
    out = []
    added = 0
    for ln in lines:
        c = parse(ln)
        if c.kind not in ('none', 'nop'):
            req = 0; dist = 0
            for p in reversed(out):
                if p.kind == 'none':
                    continue
                if dist >= 24: break
                if p.kind != 'nop':
                    k = need(p, c)
                    if k > dist: req = max(req, k - dist)
                dist += p.ws
            while req > 0:
                k = min(req, 8)
                nop = parse(f's_nop {k-1}')
                out.append(nop); req -= k; added += 1
        out.append(c)
    if verbose:
        print(f'padder inserted {added} s_nop')
    return [i.text for i in out]

def fmt(lines):
    res = []
    for ln in lines:
        if ln.endswith(':') or ln.startswith('.') or ln.startswith(';'):
            res.append(ln)
        else:
            res.append('    ' + ln)
    return '\n'.join(res) + '\n'
```

```python
import sys, os
sys.path.insert(0, os.path.dirname(__file__))
from asmlib import Asm, pad, fmt

NAME = 'gated_mix__mha_block_cached__dense_activation_gelu__decode'
LOG2E = 1.4426950408889634
import struct
def f2u(x): return struct.unpack('<I', struct.pack('<f', x))[0]

OP_OFF = 0
ML_OFF = 0x40000
O2_OFF = 0x50000

def prologue(a, nwg):
    a(f'''
    s_cmp_ge_u32 s2, {nwg}
    s_cbranch_scc1 L_end_{a.tag}
    s_load_dwordx16 s[4:19], s[0:1], 0
    s_load_dwordx8 s[20:27], s[0:1], 64
    s_load_dwordx4 s[28:31], s[0:1], 96
    v_lshrrev_b32 v3, 6, v0
    v_and_b32 v63, 63, v0
    v_readfirstlane_b32 s32, v3
    ''')

def srd(a, d, base, off_s, nrec):
    if off_s is None:
        a(f's_mov_b32 s{d}, s{base}\ns_mov_b32 s{d+1}, s{base+1}')
    else:
        a(f's_add_u32 s{d}, s{base}, {off_s}\ns_addc_u32 s{d+1}, s{base+1}, 0')
    a(f's_mov_b32 s{d+2}, {nrec}\ns_mov_b32 s{d+3}, 0x20000')

def masks(a, m, tmp, lane):
    a(f'''
    v_and_b32 v{tmp}, 1, v{lane}
    v_cmp_eq_u32 vcc, 1, v{tmp}
    v_mov_b32 v{tmp+1}, 0xffff
    v_mov_b32 v{tmp+2}, 0xffff0000
    v_cndmask_b32 v{tmp+1}, v{tmp+1}, v{tmp+2}, vcc
    v_bfe_u32 v{tmp}, v{lane}, 1, 2
    ''')
    for j in range(4):
        a(f'''
        v_cmp_eq_u32 vcc, {j}, v{tmp}
        v_cndmask_b32 v{m+j}, 0, v{tmp+1}, vcc
        ''')

def stage1():
    a = Asm(); a.tag = 's1'
    prologue(a, 256)
    LANE = 63
    a(f'''
    v_and_b32 v44, 15, v{LANE}
    v_lshrrev_b32 v45, 4, v{LANE}
    v_lshlrev_b32 v44, 4, v44
    v_lshl_add_u32 v1, v45, 9, v44
    v_lshl_add_u32 v2, v45, 13, v44
    s_and_b32 s33, s2, 15
    s_bfe_u32 s34, s2, 0x10004
    s_and_b32 s35, s2, 31
    s_lshl_b32 s35, s35, 21
    s_lshr_b32 s89, s2, 5
    s_lshl_b32 s89, s89, 18
    s_add_u32 s35, s35, s89
    s_lshl_b32 s89, s32, 15
    s_add_u32 s35, s35, s89
    s_mul_i32 s88, s32, {56*8192}
    s_lshl_b32 s89, s33, 9
    s_add_u32 s88, s88, s89
    s_mul_i32 s90, s34, 896
    s_mul_i32 s91, s32, 112
    s_add_u32 s90, s90, s91
    s_waitcnt lgkmcnt(0)
    ''')
    srd(a, 44, 10, 's88', 55*8192+512)
    srd(a, 36, 6, 's35', 32768)
    srd(a, 40, 8, 's35', 32768)
    a(f'''
    s_add_u32 s90, s4, s90
    s_addc_u32 s91, s5, 0
    s_load_dwordx16 s[52:67], s[90:91], 0
    s_load_dwordx8 s[68:75], s[90:91], 64
    s_load_dwordx4 s[76:79], s[90:91], 96
    s_mov_b32 s88, 0
    ''')
    for i in range(1, 8):
        a(f's_mov_b32 s{80+i}, {4096*i}')
    WQ = 64; K0 = 176
    def kreg(t):
        return K0 + 8*t if t < 8 else WQ + 8*(t-8)
    def vreg(t):
        return WQ + 8*(8+t) if t < 6 else kreg(t-6)
    kseq = {}; vseq = {}; wseq = {}
    def kv_load(srd_, t, hf, reg, seqd):
        so = '0' if t < 2 else f's{80 + (t>>1)}'
        imm = hf*256 + (t & 1)*2048
        a(f'buffer_load_dwordx4 v[{reg+4*hf}:{reg+4*hf+3}], v1, s[{srd_}:{srd_+3}], {so} offen offset:{imm}{KVFLAG}')
        seqd[(t, hf)] = a.vm_mark()
    kn = 0
    for t in range(14):
        for hf in range(2):
            r = WQ + 8*t + 4*hf
            a(f'buffer_load_dwordx4 v[{r}:{r+3}], v2, s[44:47], s88 offen offset:{hf*256}')
            wseq[(t, hf)] = a.vm_mark()
        if t < 13: a('s_add_u32 s88, s88, 32768')
        if t & 1:
            kv_load(36, kn >> 1, kn & 1, kreg(kn >> 1), kseq); kn += 1
    while kn < 16:
        kv_load(36, kn >> 1, kn & 1, kreg(kn >> 1), kseq); kn += 1
    a(f'''
    v_lshrrev_b32 v45, 4, v{LANE}
    v_mul_u32_u24 v45, 0x202, v45
    v_add_u32 v45, 0x100, v45
    v_or_b32 v46, 0x0c0c0000, v45
    v_lshlrev_b32 v47, 16, v45
    v_or_b32 v47, 0x0c0c, v47
    v_and_b32 v44, 1, v{LANE}
    v_cmp_eq_u32 vcc, 1, v44
    v_cndmask_b32 v46, v46, v47, vcc
    v_bfe_u32 v44, v{LANE}, 1, 2
    v_mov_b32 v47, 0x0c0c0c0c
    ''')
    for j in range(4):
        a(f'''
        v_cmp_eq_u32 vcc, {j}, v44
        v_cndmask_b32 v{4+j}, v47, v46, vcc
        ''')
    a('s_waitcnt lgkmcnt(0)')
    for t in range(14):
        a(f'v_mov_b32 v44, s{52 + 2*t + 1}')
        for j in range(4):
            a(f'v_perm_b32 v{8+j}, v44, s{52+2*t}, v{4+j}')
        r = WQ + 8*t
        for hf in range(2):
            a.vm_wait(wseq[(t, hf)])
            acc = 12 + 4*hf
            c = '0' if t == 0 else f'v[{acc}:{acc+3}]'
            a(f'v_mfma_f32_16x16x32_bf16 v[{acc}:{acc+3}], v[8:11], v[{r+4*hf}:{r+4*hf+3}], {c}')
        for hf in range(2):
            if t < 8: kv_load(36, 8+t, hf, kreg(8+t), kseq)
            else:     kv_load(40, t-8, hf, vreg(t-8), vseq)
    masks(a, 4, 44, LANE)
    a(f'''
    v_and_b32 v44, 15, v{LANE}
    v_lshrrev_b32 v45, 4, v{LANE}
    v_lshlrev_b32 v44, 5, v44
    v_lshl_add_u32 v44, v45, 4, v44
    s_lshl_b32 s89, s32, 10
    v_add_u32 v48, s89, v44
    v_lshlrev_b32 v49, 2, v0
    s_mov_b32 exec_hi, 0
    ds_write_b128 v48, v[12:15]
    ds_write_b128 v48, v[16:19] offset:512
    s_mov_b32 exec_hi, -1
    s_waitcnt lgkmcnt(0)
    s_barrier
    s_cmp_ge_u32 s32, 4
    s_cbranch_scc1 L_qskip
    ''')
    for i in range(4):
        a(f'ds_read2st64_b32 v[{50+2*i}:{51+2*i}], v49 offset0:{8*i} offset1:{8*i+4}')
    a('''
    s_waitcnt lgkmcnt(0)
    v_add_f32 v50, v50, v51
    v_add_f32 v52, v52, v53
    v_add_f32 v54, v54, v55
    v_add_f32 v56, v56, v57
    v_add_f32 v50, v50, v52
    v_add_f32 v54, v54, v56
    v_add_f32 v50, v50, v54
    v_cvt_pk_bf16_f32 v50, v50, v50
    v_lshlrev_b32 v51, 1, v0
    ds_write_b16 v51, v50 offset:8192
    s_waitcnt lgkmcnt(0)
    ''')
    a.label('L_qskip')
    a(f'''
    s_barrier
    v_and_b32 v44, 15, v{LANE}
    v_lshlrev_b32 v44, 4, v44
    ds_read_b128 v[20:23], v44 offset:8192
    ds_read_b128 v[24:27], v44 offset:{8192+256}
    s_waitcnt lgkmcnt(0)
    ''')
    S = 28
    for qd in range(4):
        ts = [4*qd + i for i in range(4)]
        a.vm_wait(kseq[(ts[-1], 1)])
        for k in range(4):
            for i, t in enumerate(ts):
                r = kreg(t)
                c0 = '0' if k == 0 else f'v{S+t}'
                c1 = '0' if k == 0 else f'v{44+i}'
                a(f'v_dot2_f32_bf16 v{S+t}, v{r+k}, v{20+k}, {c0}')
                a(f'v_dot2_f32_bf16 v{44+i}, v{r+4+k}, v{24+k}, {c1}')
        for t in ts:
            v = t + 6
            if v < 16:
                for hf in range(2): kv_load(40, v, hf, vreg(v), vseq)
        for i, t in enumerate(ts):
            a(f'v_add_f32 v{S+t}, v{S+t}, v{44+i}')
        for ror in (8, 4, 2, 1):
            for t in ts:
                a(f'v_add_f32_dpp v{S+t}, v{S+t}, v{S+t} row_ror:{ror} row_mask:0xf bank_mask:0xf')
    a(f'''
    v_max3_f32 v44, v{S}, v{S+1}, v{S+2}
    v_max3_f32 v45, v{S+3}, v{S+4}, v{S+5}
    v_max3_f32 v46, v{S+6}, v{S+7}, v{S+8}
    v_max3_f32 v47, v{S+9}, v{S+10}, v{S+11}
    v_max3_f32 v44, v44, v{S+12}, v{S+13}
    v_max3_f32 v45, v45, v{S+14}, v{S+15}
    v_max3_f32 v44, v44, v45, v46
    v_max_f32 v44, v44, v47
    v_mov_b32 v45, v44
    v_permlane32_swap_b32 v44, v45
    v_max_f32 v44, v44, v45
    v_mov_b32 v45, v44
    v_permlane16_swap_b32 v44, v45
    v_max_f32 v44, v44, v45
    s_lshl_b32 s89, s32, 2
    v_mov_b32 v46, s89
    ds_write_b32 v46, v44 offset:8704
    s_waitcnt lgkmcnt(0)
    s_barrier
    v_mov_b32 v47, 0
    ds_read_b128 v[50:53], v47 offset:8704
    ds_read_b128 v[54:57], v47 offset:8720
    s_mov_b32 s92, {f2u(LOG2E/16.0):#x}
    s_waitcnt lgkmcnt(0)
    v_max3_f32 v50, v50, v51, v52
    v_max3_f32 v53, v53, v54, v55
    v_max3_f32 v50, v50, v56, v57
    v_max_f32 v50, v50, v53
    v_mul_f32 v58, s92, v50
    ''')
    for t in range(16):
        a(f'v_fma_f32 v{S+t}, v{S+t}, s92, -v58')
    for t in range(16):
        a(f'v_exp_f32 v{S+t}, v{S+t}')
    for t in range(16):
        a(f'v_cvt_pk_bf16_f32 v{S+t}, v{S+t}, v{S+t}')
    a('v_mov_b32 v60, 0x3f80')
    for t in range(16):
        dst = 59 if t % 2 == 0 else 61
        c = '0' if t < 2 else f'v{dst}'
        a(f'v_dot2_f32_bf16 v{dst}, v{S+t}, v60, {c}')
    a(f'''
    v_add_f32 v59, v59, v61
    v_mov_b32 v45, v59
    v_permlane32_swap_b32 v59, v45
    v_add_f32 v59, v59, v45
    v_mov_b32 v45, v59
    v_permlane16_swap_b32 v59, v45
    v_add_f32 v59, v59, v45
    ds_write_b32 v46, v59 offset:8736
    ''')
    for t in range(16):
        for j in range(4):
            a(f'v_and_b32 v{8+j}, v{S+t}, v{4+j}')
        r = vreg(t)
        for hf in range(2):
            a.vm_wait(vseq[(t, hf)])
            acc = 12 + 4*hf
            c = '0' if t == 0 else f'v[{acc}:{acc+3}]'
            a(f'v_mfma_f32_16x16x32_bf16 v[{acc}:{acc+3}], v[8:11], v[{r+4*hf}:{r+4*hf+3}], {c}')
    a(f'''
    s_and_b32 s35, s2, 31
    s_lshl_b32 s35, s35, 3
    s_lshr_b32 s89, s2, 5
    s_add_u32 s35, s35, s89
    s_lshl_b32 s93, s35, 3
    s_add_u32 s93, s93, {ML_OFF}
    s_lshl_b32 s35, s35, 10
    ''')
    srd(a, 48, 30, None, 0x100000)
    a(f'''
    s_mov_b32 exec_hi, 0
    ds_write_b128 v48, v[12:15]
    ds_write_b128 v48, v[16:19] offset:512
    s_mov_b32 exec_hi, -1
    s_waitcnt lgkmcnt(0)
    s_barrier
    s_cmp_ge_u32 s32, 4
    s_cbranch_scc1 L_end_s1
    ''')
    for i in range(4):
        a(f'ds_read2st64_b32 v[{50+2*i}:{51+2*i}], v49 offset0:{8*i} offset1:{8*i+4}')
    a(f'''
    ds_read_b128 v[8:11], v47 offset:8736
    ds_read_b128 v[12:15], v47 offset:8752
    s_waitcnt lgkmcnt(2)
    v_add_f32 v50, v50, v51
    v_add_f32 v52, v52, v53
    v_add_f32 v54, v54, v55
    v_add_f32 v56, v56, v57
    v_add_f32 v50, v50, v52
    v_add_f32 v54, v54, v56
    v_add_f32 v50, v50, v54
    buffer_store_dword v50, v49, s[48:51], s35 offen
    s_waitcnt lgkmcnt(0)
    v_add_f32 v8, v8, v9
    v_add_f32 v10, v10, v11
    v_add_f32 v12, v12, v13
    v_add_f32 v14, v14, v15
    v_add_f32 v8, v8, v10
    v_add_f32 v12, v12, v14
    v_add_f32 v59, v8, v12
    v_cmp_eq_u32 vcc, 0, v0
    s_and_saveexec_b64 s[94:95], vcc
    s_cbranch_execz L_end_s1
    v_mov_b32 v60, 0
    buffer_store_dwordx2 v[58:59], v60, s[48:51], s93 offen
    ''')
    a.label('L_end_s1')
    a('s_endpgm')
    return a, 240

def stage2():
    a = Asm(); a.tag = 's2'
    prologue(a, 256)
    LANE = 63
    a(f'''
    s_and_b32 s33, s2, 15
    s_lshr_b32 s34, s2, 6
    s_bfe_u32 s35, s2, 0x20004
    s_lshl_b32 s60, s33, 2
    s_add_u32 s60, s60, s34
    s_cmp_lt_u32 s60, 56
    s_cselect_b32 s61, -1, 0
    s_cmp_lt_u32 s32, 7
    s_cselect_b32 s62, -1, 0
    s_and_b32 s62, s62, s61
    s_waitcnt lgkmcnt(0)
    ''')
    a(f'''
    s_mul_i32 s63, s32, {64*3584}
    s_lshl_b32 s64, s60, 6
    s_add_u32 s63, s63, s64
    ''')
    srd(a, 36, 16, 's63', 63*3584+64)
    a('s_and_b32 s38, s38, s62')
    srd(a, 40, 4, None, 1792)
    srd(a, 44, 24, None, 896)
    a(f's_mul_i32 s63, s60, {32*896}')
    srd(a, 48, 20, 's63', 32*896)
    a('s_and_b32 s50, s50, s61')
    a(f's_mul_i32 s63, s60, {64*896}')
    srd(a, 52, 12, 's63', 64*896)
    srd(a, 56, 30, None, 0x100000)
    a('s_lshl_b32 s63, s60, 6')
    srd(a, 64, 18, 's63', 64)
    a('s_and_b32 s66, s66, s61')
    srd(a, 68, 22, None, 896)
    a('''
    s_or_b32 s63, s60, s32
    s_cmp_eq_u32 s63, 0
    s_cselect_b32 s70, 896, 0
    ''')
    a(f'''
    v_lshrrev_b32 v1, 2, v{LANE}
    v_and_b32 v2, 3, v{LANE}
    v_mul_u32_u24 v3, {4*3584}, v1
    v_lshl_add_u32 v3, v2, 4, v3
    s_mov_b32 s72, 7168
    buffer_load_dwordx4 v[64:67], v3, s[36:39], 0 offen
    buffer_load_dwordx4 v[68:71], v3, s[36:39], 0 offen offset:3584
    buffer_load_dwordx4 v[72:75], v3, s[36:39], s72 offen
    buffer_load_dwordx4 v[76:79], v3, s[36:39], s72 offen offset:3584
    s_lshl_b32 s73, s32, 7
    v_lshlrev_b32 v4, 3, v1
    buffer_load_dwordx2 v[80:81], v4, s[40:43], s73 offen
    buffer_load_dwordx2 v[82:83], v4, s[40:43], s73 offen offset:896
    v_lshlrev_b32 v5, 4, v{LANE}
    buffer_load_dwordx4 v[84:87], v5, s[40:43], 0 offen
    buffer_load_dwordx4 v[88:91], v5, s[40:43], 0 offen offset:896
    buffer_load_dwordx4 v[92:95], v5, s[44:47], 0 offen
    v_and_b32 v6, 31, v{LANE}
    v_lshlrev_b32 v6, 1, v6
    buffer_load_ushort v96, v6, s[64:67], 0 offen
    ''')
    a(f'''
    v_lshrrev_b32 v7, 4, v{LANE}
    v_and_b32 v8, 15, v{LANE}
    v_lshlrev_b32 v8, 4, v8
    s_mul_i32 s74, s35, 224
    v_add_u32 v8, s74, v8
    s_and_b32 s75, s32, 3
    s_lshl_b32 s76, s75, 3
    v_add_u32 v9, s76, v7
    v_mul_u32_u24 v9, 896, v9
    v_add_u32 v9, v9, v8
    s_lshl_b32 s76, s75, 2
    v_add_u32 v10, s76, v7
    v_mul_u32_u24 v10, {4*896}, v10
    v_add_u32 v10, v10, v8
    buffer_load_dwordx4 v[100:103], v9, s[48:51], 0 offen
    buffer_load_dwordx4 v[104:107], v9, s[48:51], 0 offen offset:3584
    ''')
    for t in range(4):
        a(f'buffer_load_dwordx4 v[{108+4*t}:{111+4*t}], v10, s[52:55], 0 offen offset:{896*t}')
    a(f'''
    v_and_b32 v11, 1, v7
    v_lshl_add_u32 v11, v11, 3, v8
    buffer_load_dwordx2 v[124:125], v11, s[68:71], 0 offen
    ''')
    a(f'''
    v_bfe_u32 v12, v{LANE}, 3, 1
    v_and_b32 v13, 7, v{LANE}
    v_lshlrev_b32 v12, 4, v12
    v_add_u32 v12, s33, v12
    v_lshl_add_u32 v12, v12, 3, v13
    v_lshlrev_b32 v13, 3, v12
    v_lshlrev_b32 v12, 10, v12
    v_lshl_add_u32 v12, v7, 4, v12
    s_lshl_b32 s76, s34, 8
    s_lshl_b32 s77, s75, 6
    s_add_u32 s76, s76, s77
    s_mov_b32 s77, {ML_OFF}
    buffer_load_dwordx4 v[128:131], v12, s[56:59], s76 offen
    buffer_load_dwordx2 v[132:133], v13, s[56:59], s77 offen
    ''')
    masks(a, 16, 20, LANE)
    a('s_waitcnt vmcnt(0)')
    a('s_mov_b32 s78, 0x05040100\ns_mov_b32 s79, 0x07060302')
    ACC = 32
    for p in range(2):
        for q in range(4):
            w0 = 64 + 8*p + q; w1_ = w0 + 4
            a(f'v_perm_b32 v{24+2*(q&1)}, v{w1_}, v{w0}, s78')
            a(f'v_perm_b32 v{25+2*(q&1)}, v{w1_}, v{w0}, s79')
            for b in range(2):
                for e in range(2):
                    d = ACC + b*8 + 2*q + e
                    c = '0' if p == 0 else f'v{d}'
                    a(f'v_dot2_f32_bf16 v{d}, v{24+2*(q&1)+e}, v{80+2*b+p}, {c}')
    for f in range(8):
        a(f'v_permlane32_swap_b32 v{ACC+f}, v{ACC+8+f}')
    for f in range(8):
        a(f'v_add_f32 v{ACC+f}, v{ACC+f}, v{ACC+8+f}')
    for f in range(4):
        a(f'v_permlane16_swap_b32 v{ACC+f}, v{ACC+4+f}')
    for f in range(4):
        a(f'v_add_f32 v{ACC+f}, v{ACC+f}, v{ACC+4+f}')
    for ror in (4, 8):
        for f in range(4):
            a(f'v_add_f32_dpp v{ACC+f}, v{ACC+f}, v{ACC+f} row_ror:{ror} row_mask:0xf bank_mask:0xf')
    a(f'''
    v_lshrrev_b32 v24, 5, v{LANE}
    v_lshlrev_b32 v24, 7, v24
    v_and_b32 v25, 3, v{LANE}
    v_lshl_add_u32 v24, v25, 5, v24
    v_bfe_u32 v25, v{LANE}, 4, 1
    v_lshl_add_u32 v24, v25, 4, v24
    s_lshl_b32 s63, s32, 8
    v_add_u32 v24, s63, v24
    ds_write_b128 v24, v[{ACC}:{ACC+3}]
    ''')
    for b in range(2):
        for k in range(4):
            c = '0' if k == 0 else f'v{26+b}'
            a(f'v_dot2_f32_bf16 v{26+b}, v{84+4*b+k}, v{92+k}, {c}')
    a('v_permlane32_swap_b32 v26, v27\nv_add_f32 v26, v26, v27')
    for ror in (8, 4, 2, 1):
        a(f'v_add_f32_dpp v26, v26, v26 row_ror:{ror} row_mask:0xf bank_mask:0xf')
    a(f'''
    v_mov_b32 v27, v26
    v_permlane16_swap_b32 v26, v27
    v_add_f32 v26, v26, v27
    v_mul_f32 v26, {f2u(-LOG2E):#x}, v26
    v_exp_f32 v26, v26
    v_add_f32 v26, 1.0, v26
    v_rcp_f32 v26, v26
    s_nop 0
    v_readlane_b32 s80, v26, 0
    v_readlane_b32 s81, v26, 32
    v_sub_f32 v27, 1.0, v26
    s_waitcnt lgkmcnt(0)
    s_barrier
    s_cmp_lg_u32 s32, 0
    s_cbranch_scc1 L_h1skip
    v_lshlrev_b32 v24, 2, v{LANE}
    ''')
    for i in range(4):
        a(f'ds_read2st64_b32 v[{32+2*i}:{33+2*i}], v24 offset0:{2*i} offset1:{2*i+1}')
    a(f'''
    v_lshlrev_b32 v96, 16, v96
    s_waitcnt lgkmcnt(0)
    v_add_f32 v32, v32, v33
    v_add_f32 v34, v34, v35
    v_add_f32 v36, v36, v37
    v_add_f32 v38, v38, v39
    v_add_f32 v32, v32, v34
    v_add_f32 v36, v36, v38
    v_add_f32 v32, v32, v36
    v_add_f32 v32, v32, v96
    v_mul_f32 v33, v32, v32
    v_mov_b32 v34, {f2u(-2*0.7978845608028654*LOG2E):#x}
    v_mul_f32 v35, {f2u(-2*0.7978845608028654*0.044715*LOG2E):#x}, v33
    v_add_f32 v34, v34, v35
    v_mul_f32 v34, v34, v32
    v_exp_f32 v34, v34
    v_add_f32 v34, 1.0, v34
    v_rcp_f32 v34, v34
    v_mul_f32 v32, v32, v34
    v_cvt_pk_bf16_f32 v32, v32, v32
    ds_write_b32 v24, v32 offset:4096
    s_waitcnt lgkmcnt(0)
    ''')
    a.label('L_h1skip')
    a(f'''
    s_barrier
    s_cmp_ge_u32 s32, 4
    s_cbranch_scc1 L_s2red
    ''')
    a(f'''
    v_bfe_u32 v24, v{LANE}, 3, 1
    v_lshlrev_b32 v24, 5, v24
    v_add_u32 v24, v24, v7
    s_lshl_b32 s63, s32, 3
    v_add_u32 v24, s63, v24
    v_lshlrev_b32 v24, 2, v24
    ds_read_b32 v32, v24 offset:4096
    ds_read_b32 v33, v24 offset:4112
    v_lshlrev_b32 v40, 16, v124
    v_and_b32 v41, 0xffff0000, v124
    v_lshlrev_b32 v42, 16, v125
    v_and_b32 v43, 0xffff0000, v125
    s_waitcnt lgkmcnt(0)
    ''')
    for u in range(2):
        for j in range(4):
            a(f'v_and_b32 v{28+j if u==0 else 36+j}, v{32+u}, v{16+j}')
    a('''
    v_mfma_f32_16x16x32_bf16 v[40:43], v[28:31], v[100:103], v[40:43]
    v_mfma_f32_16x16x32_bf16 v[40:43], v[36:39], v[104:107], v[40:43]
    ''')
    def allred8(op, r, tmp=None):
        a(f'{op}_dpp v{r}, v{r}, v{r} quad_perm:[1,0,3,2] row_mask:0xf bank_mask:0xf')
        a(f'{op}_dpp v{r}, v{r}, v{r} quad_perm:[2,3,0,1] row_mask:0xf bank_mask:0xf')
        a(f'{op}_dpp v{r}, v{r}, v{r} row_half_mirror row_mask:0xf bank_mask:0xf')
    a('v_mov_b32 v44, v132')
    allred8('v_max_f32', 44)
    a('''
    v_sub_f32 v45, v132, v44
    v_exp_f32 v45, v45
    s_nop 0
    v_mul_f32 v46, v45, v133
    ''')
    allred8('v_add_f32', 46)
    a(f'''
    v_rcp_f32 v46, v46
    v_bfe_u32 v47, v{LANE}, 3, 1
    v_cmp_eq_u32 vcc, 1, v47
    v_mov_b32 v47, s80
    v_mov_b32 v48, s81
    v_cndmask_b32 v47, v47, v48, vcc
    v_mul_f32 v45, v45, v46
    v_mul_f32 v45, v45, v47
    ''')
    for t in range(4): a(f'v_mul_f32 v{128+t}, v{128+t}, v45')
    for mode in ('quad_perm:[1,0,3,2]', 'quad_perm:[2,3,0,1]', 'row_half_mirror'):
        for t in range(4):
            a(f'v_add_f32_dpp v{128+t}, v{128+t}, v{128+t} {mode} row_mask:0xf bank_mask:0xf')
    for t in range(4): a(f'v_cvt_pk_bf16_f32 v{128+t}, v{128+t}, v{128+t}')
    for r in range(4): a(f'v_mul_f32 v{40+r}, v{40+r}, v27')
    for t in range(4):
        base = 28 if t % 2 == 0 else 36
        for j in range(4): a(f'v_and_b32 v{base+j}, v{128+t}, v{16+j}')
        a(f'v_mfma_f32_16x16x32_bf16 v[40:43], v[{base}:{base+3}], v[{108+4*t}:{111+4*t}], v[40:43]')
    a(f'''
    v_lshlrev_b32 v24, 4, v{LANE}
    s_lshl_b32 s63, s32, 10
    v_add_u32 v25, s63, v24
    ds_write_b128 v25, v[40:43] offset:8192
    s_waitcnt lgkmcnt(0)
    ''')
    a.label('L_s2red')
    a(f'''
    s_barrier
    s_cmp_lg_u32 s32, 0
    s_cbranch_scc1 L_end_s2
    ds_read_b128 v[32:35], v24 offset:8192
    ds_read_b128 v[36:39], v24 offset:{8192+1024}
    ds_read_b128 v[40:43], v24 offset:{8192+2048}
    ds_read_b128 v[44:47], v24 offset:{8192+3072}
    v_lshrrev_b32 v25, 5, v{LANE}
    v_mul_u32_u24 v25, 1792, v25
    v_and_b32 v26, 15, v{LANE}
    v_lshl_add_u32 v25, v26, 5, v25
    v_bfe_u32 v27, v{LANE}, 4, 1
    v_lshl_add_u32 v25, v27, 4, v25
    s_mul_i32 s63, s60, 3584
    s_mul_i32 s72, s35, 448
    s_add_u32 s63, s63, s72
    s_add_u32 s63, s63, {O2_OFF}
    v_cmp_gt_u32 vcc, 14, v26
    s_waitcnt lgkmcnt(0)
    ''')
    for r in range(4):
        a(f'v_add_f32 v{32+r}, v{32+r}, v{36+r}')
    for r in range(4):
        a(f'v_add_f32 v{40+r}, v{40+r}, v{44+r}')
    for r in range(4):
        a(f'v_add_f32 v{32+r}, v{32+r}, v{40+r}')
    a('''
    s_and_b64 exec, exec, vcc
    buffer_store_dwordx4 v[32:35], v25, s[56:59], s63 offen
    ''')
    a.label('L_end_s2')
    a('s_endpgm')
    return a, 136

def stage3():
    a = Asm(); a.tag = 's3'
    prologue(a, 28)
    LANE = 63
    a(f'''
    s_cmp_ge_u32 s2, 14
    s_cselect_b32 s33, 1, 0
    s_mul_i32 s34, s33, 14
    s_sub_u32 s34, s2, s34
    s_mul_i32 s35, s33, 1792
    s_lshl_b32 s36, s34, 7
    s_add_u32 s35, s35, s36
    s_add_u32 s35, s35, {O2_OFF}
    s_waitcnt lgkmcnt(0)
    ''')
    srd(a, 56, 30, None, 0x100000)
    srd(a, 60, 26, None, 1792)
    a(f'''
    v_lshrrev_b32 v1, 3, v0
    v_mul_u32_u24 v1, 3584, v1
    v_and_b32 v2, 7, v0
    v_lshl_add_u32 v1, v2, 4, v1
    buffer_load_dwordx4 v[4:7], v1, s[56:59], s35 offen
    s_waitcnt vmcnt(0)
    ''')
    for r in range(4):
        a(f'v_add_f32_dpp v{4+r}, v{4+r}, v{4+r} row_ror:8 row_mask:0xf bank_mask:0xf')
    a(f'''
    v_permlane32_swap_b32 v4, v5
    v_permlane32_swap_b32 v6, v7
    v_add_f32 v4, v4, v5
    v_add_f32 v6, v6, v7
    v_permlane16_swap_b32 v4, v6
    v_add_f32 v4, v4, v6
    ''')
    a(f'''
    v_and_b32 v8, 7, v{LANE}
    v_lshlrev_b32 v8, 2, v8
    v_bfe_u32 v9, v{LANE}, 4, 1
    v_lshl_add_u32 v8, v9, 1, v8
    v_lshrrev_b32 v9, 5, v{LANE}
    v_add_u32 v8, v8, v9
    v_lshlrev_b32 v8, 2, v8
    s_lshl_b32 s37, s32, 7
    v_add_u32 v8, s37, v8
    ds_write_b32 v8, v4
    s_waitcnt lgkmcnt(0)
    s_barrier
    s_cmp_lg_u32 s32, 0
    s_cbranch_scc1 L_end_s3
    v_and_b32 v8, 31, v{LANE}
    v_lshlrev_b32 v9, 2, v8
    ''')
    for i in range(4):
        a(f'ds_read2_b32 v[{10+2*i}:{11+2*i}], v9 offset0:{64*i} offset1:{64*i+32}')
    a(f'''
    s_waitcnt lgkmcnt(0)
    v_add_f32 v10, v10, v11
    v_add_f32 v12, v12, v13
    v_add_f32 v14, v14, v15
    v_add_f32 v16, v16, v17
    v_add_f32 v10, v10, v12
    v_add_f32 v14, v14, v16
    v_add_f32 v10, v10, v14
    v_cvt_pk_bf16_f32 v10, v10, v10
    s_mul_i32 s35, s33, 896
    s_lshl_b32 s36, s34, 6
    s_add_u32 s35, s35, s36
    v_lshlrev_b32 v9, 1, v8
    s_mov_b32 exec_hi, 0
    buffer_store_short v10, v9, s[60:63], s35 offen
    ''')
    a.label('L_end_s3')
    a('s_endpgm')
    return a, 64

HEADER = open(os.path.join(os.path.dirname(__file__), '..', 'cdna_kernels', NAME + '.s.ref')).read().split('; Override launch')[0]

def kernel_text(label, a, nv):
    body = fmt(pad(a.lines, True))
    return f'''.text
.globl {label}
.p2align 8
.type {label},@function
{label}:
{body}
''', f'''.amdhsa_kernel {label}
  .amdhsa_next_free_vgpr {nv}
  .amdhsa_next_free_sgpr 102
  .amdhsa_accum_offset {(nv+3)//4*4}
  .amdhsa_group_segment_fixed_size 0
  .amdhsa_kernarg_size 112
  .amdhsa_user_sgpr_count 2
  .amdhsa_user_sgpr_kernarg_segment_ptr 1
  .amdhsa_system_sgpr_workgroup_id_x 1
.end_amdhsa_kernel
'''

if __name__ == '__main__':
    out = sys.argv[1]
    KVFLAG = ' nt' if 'nt' in sys.argv[2:] else ''
    ks = [(NAME + '_kernel', stage1(), (256, 512, 8768)),
          ('stage2_kernel', stage2(), (256, 512, 12288)),
          ('stage3_kernel', stage3(), (28, 512, 1024))]
    txt = HEADER
    for label, _, (g, b, l) in ks:
        txt += f'; @launch kernel={label} grid=({g},1,1) block=({b},1,1) lds={l}\n'
    txt += '.amdgcn_target "amdgcn-amd-amdhsa--gfx950"\n'
    descs = ''
    for label, (a, nv), _ in ks:
        t, d = kernel_text(label, a, nv)
        txt += t; descs += '.p2align 6\n' + d
    txt += '.section .rodata,"a"\n' + descs
    open(out, 'w').write(txt)
```

```python
import sys, os, struct
sys.path.insert(0, os.path.dirname(__file__))
from asmlib import Asm, pad, fmt

NAME = 'gated_mix__mha_block_cached__dense_activation_gelu__decode'
LOG2E = 1.4426950408889634
def f2u(x): return struct.unpack('<I', struct.pack('<f', x))[0]

class Cfg:
    nt = True
    ts = False
    nv0 = 8
    k0 = 8
    spin = 1 << 16
cfg = Cfg()

R_OP, R_QP, R_ML, R_O2 = 0, 1024, 1536, 2048
WS_BYTES = 0x100000
TS_OFF = 0x100000
L_QPART, L_QB, L_FLAG, L_MLW, L_H1, L_OPART, L_R2, L_R3, L_END = 0, 3584, 4096, 4112, 4224, 8192, 16384, 20480, 21504

sX, sK, sV, sWQ, sWO, sW1, sB1, sW2, sB2, sGATE, sOUT, sDBG, sWS = 4, 6, 8, 10, 12, 16, 18, 20, 22, 24, 26, 28, 30
sWBASE, sWAVE, sH, sB, sJ = 3, 32, 33, 34, 35
rK, rV, rWS, rT1, rT2, rT3, rDBG = 36, 40, 44, 48, 52, 56, 60
sO = 64
sSPIN, sREC, sT0, sT1, sT2, sT3, sT4, sT5 = 72, 73, 74, 75, 76, 77, 78, 79
sTS = 80
sG0, sG1 = 100, 101
vLANE, vKV = 1, 2
vM, vA, vACC, vQ, vS, vT = 4, 8, 12, 20, 28, 44
KV = 64; EX = 192

def srd(a, d, base, off_s, nrec):
    if off_s is None:
        a(f's_mov_b32 s{d}, s{base}\ns_mov_b32 s{d+1}, s{base+1}')
    else:
        a(f's_add_u32 s{d}, s{base}, {off_s}\ns_addc_u32 s{d+1}, s{base+1}, 0')
    a(f's_mov_b32 s{d+2}, {nrec}\ns_mov_b32 s{d+3}, 0x20000')

def stamp(a, i):
    if cfg.ts: a(f's_memrealtime s[{sTS+2*i}:{sTS+2*i+1}]')

def stamp_flush(a, n=10):
    if not cfg.ts: return
    a('s_waitcnt lgkmcnt(0)')
    a('s_mov_b64 exec, -1')
    a(f's_lshl_b32 s{sT0}, s2, 3\ns_add_u32 s{sT0}, s{sT0}, s{sWAVE}\ns_lshl_b32 s{sT0}, s{sT0}, 6\ns_add_u32 s{sT0}, s{sT0}, {TS_OFF}')
    a(f's_mov_b32 s{rWS+2}, 0x200000')
    a('v_mov_b32 v44, 0')
    for i in range(n):
        a(f'v_mov_b32 v45, s{sTS+2*i}')
        a(f'buffer_store_dword v45, v44, s[{rWS}:{rWS+3}], s{sT0} offen offset:{4*i}')
        a('s_nop 1')

def masks(a, lane, tmp):
    a(f'''
    v_and_b32 v{tmp}, 1, v{lane}
    v_cmp_eq_u32 vcc, 1, v{tmp}
    v_mov_b32 v{tmp+1}, 0xffff
    v_mov_b32 v{tmp+2}, 0xffff0000
    v_cndmask_b32 v{tmp+1}, v{tmp+1}, v{tmp+2}, vcc
    v_bfe_u32 v{tmp}, v{lane}, 1, 2
    ''')
    for j in range(4):
        a(f'''
        v_cmp_eq_u32 vcc, {j}, v{tmp}
        v_cndmask_b32 v{vM+j}, 0, v{tmp+1}, vcc
        ''')

uid = [0]
def newlabel(p):
    uid[0] += 1
    return f'L_{p}_{uid[0]}'

def spin_head(a):
    l = newlabel('spin'); d = newlabel('done')
    a(f's_mov_b32 s{sSPIN}, 0')
    a.label(l)
    return l, d
def spin_tail(a, l, d):
    a(f'''
    s_add_u32 s{sSPIN}, s{sSPIN}, 1
    s_cmp_lt_u32 s{sSPIN}, {cfg.spin}
    s_cbranch_scc1 {l}
    ''')
    a.label(d)

def build():
    a = Asm()
    FL = ' nt' if cfg.nt else ''
    kseq = {}; vseq = {}
    def kv_load(srd_, t, hf, seqd):
        reg = KV + 8*t + 4*hf
        so = '0' if t < 2 else f's{sO + (t>>1)}'
        imm = hf*256 + (t & 1)*2048
        a(f'buffer_load_dwordx4 v[{reg}:{reg+3}], v{vKV}, s[{srd_}:{srd_+3}], {so} offen offset:{imm}{FL}')
        seqd[(t, hf)] = a.vm_mark()

    a(f'''
    s_cmp_ge_u32 s2, 256
    s_cbranch_scc1 L_end
    s_load_dwordx16 s[4:19], s[0:1], 0
    s_load_dwordx8 s[20:27], s[0:1], 64
    s_load_dwordx4 s[28:31], s[0:1], 96
    v_lshrrev_b32 v3, 6, v0
    v_and_b32 v{vLANE}, 63, v0
    v_readfirstlane_b32 s{sWAVE}, v3
    s_and_b32 s{sWBASE}, s2, 15
    s_and_b32 s{sH}, s2, 7
    s_lshl_b32 s{sH}, s{sH}, 1
    s_bfe_u32 s{sT0}, s2, 0x10003
    s_or_b32 s{sH}, s{sH}, s{sT0}
    s_lshr_b32 s{sJ}, s2, 4
    s_and_b32 s{sB}, s{sJ}, 1
    s_lshl_b32 s{sREC}, s2, 12
    v_and_b32 v44, 15, v{vLANE}
    v_lshrrev_b32 v45, 4, v{vLANE}
    v_lshlrev_b32 v44, 4, v44
    v_lshl_add_u32 v{vKV}, v45, 9, v44
    ''')
    a(f'''
    s_lshl_b32 s{sT0}, s{sB}, 4
    s_add_u32 s{sT0}, s{sT0}, s{sH}
    s_lshl_b32 s{sT0}, s{sT0}, 21
    s_lshr_b32 s{sT1}, s{sJ}, 1
    s_lshl_b32 s{sT1}, s{sT1}, 18
    s_add_u32 s{sT0}, s{sT0}, s{sT1}
    s_lshl_b32 s{sT1}, s{sWAVE}, 15
    s_add_u32 s{sT0}, s{sT0}, s{sT1}
    ''')
    for i in range(1, 8): a(f's_mov_b32 s{sO+i}, {4096*i}')
    a(f'''
    s_and_b32 s{sT1}, s{sJ}, 3
    s_mul_i32 s{sT1}, s{sT1}, 112
    s_lshl_b32 s{sT2}, s{sWAVE}, 4
    s_add_u32 s{sT1}, s{sT1}, s{sT2}
    s_sub_u32 s{sT1}, s{sT1}, 16
    s_lshl_b32 s{sT2}, s{sT1}, 13
    s_lshl_b32 s{sT3}, s{sH}, 9
    s_add_u32 s{sT2}, s{sT2}, s{sT3}
    s_lshr_b32 s{sT3}, s{sJ}, 2
    s_lshl_b32 s{sT3}, s{sT3}, 7
    s_add_u32 s{sT2}, s{sT2}, s{sT3}
    s_lshl_b32 s{sT1}, s{sT1}, 1
    s_waitcnt lgkmcnt(0)
    ''')
    srd(a, rWS, sWS, None, WS_BYTES)
    srd(a, rDBG, sDBG, None, 256)
    a(f's_cmp_eq_u32 s{sWAVE}, 0')
    stamp(a, 0)
    a('s_cbranch_scc1 L_service')
    srd(a, rT1, sWQ, f's{sT2}', 15*8192+128)
    srd(a, rT2, sX, None, 1792)
    a(f'''
    v_lshrrev_b32 v44, 3, v{vLANE}
    v_and_b32 v45, 7, v{vLANE}
    v_lshlrev_b32 v45, 4, v45
    v_lshl_add_u32 v44, v44, 13, v45
    s_mov_b32 s{sT3}, 65536
    buffer_load_dwordx4 v[{EX}:{EX+3}], v44, s[{rT1}:{rT1+3}], 0 offen
    buffer_load_dwordx4 v[{EX+4}:{EX+7}], v44, s[{rT1}:{rT1+3}], s{sT3} offen
    v_bfe_u32 v46, v{vLANE}, 3, 1
    v_mul_u32_u24 v46, 896, v46
    v_lshrrev_b32 v47, 4, v{vLANE}
    v_lshl_add_u32 v46, v47, 2, v46
    buffer_load_dword v{EX+8}, v46, s[{rT2}:{rT2+3}], s{sT1} offen
    buffer_load_dword v{EX+9}, v46, s[{rT2}:{rT2+3}], s{sT1} offen offset:16
    ''')
    wq_mark = a.vm_mark()
    srd(a, rK, sK, f's{sT0}', 32768)
    srd(a, rV, sV, f's{sT0}', 32768)
    a('s_barrier')
    for n in range(cfg.k0): kv_load(rK, n >> 1, n & 1, kseq)
    masks(a, vLANE, 44)
    a(f's_mov_b32 s{sT4}, 0x01000100\ns_mov_b32 s{sT5}, 0x03020302')
    a.vm_wait(wq_mark)
    stamp(a, 1)
    for u in range(2):
        for rs in range(2):
            a(f'v_perm_b32 v44, v{EX+8+u}, v{EX+8+u}, s{sT4 if rs == 0 else sT5}')
            for j in range(4): a(f'v_and_b32 v{vA+j}, v44, v{vM+j}')
            d = vACC + 4*rs
            c = '0' if u == 0 else f'v[{d}:{d+3}]'
            a(f'v_mfma_f32_16x16x32_bf16 v[{d}:{d+3}], v[{vA}:{vA+3}], v[{EX+4*u}:{EX+4*u+3}], {c}')
    a(f'''
    v_bfe_u32 v45, v{vLANE}, 3, 1
    v_cmp_eq_u32 vcc, 1, v45
    v_lshrrev_b32 v46, 5, v{vLANE}
    v_lshlrev_b32 v46, 8, v46
    v_and_b32 v47, 7, v{vLANE}
    v_lshl_add_u32 v46, v47, 5, v46
    v_bfe_u32 v47, v{vLANE}, 4, 1
    v_lshl_add_u32 v46, v47, 4, v46
    s_lshl_b32 s{sT1}, s{sWAVE}, 9
    s_sub_u32 s{sT1}, s{sT1}, 512
    v_add_u32 v46, s{sT1}, v46
    ''')
    for r in range(4): a(f'v_cndmask_b32 v{vACC+r}, v{vACC+r}, v{vACC+4+r}, vcc')
    for r in range(4): a(f'v_add_f32_dpp v{vACC+r}, v{vACC+r}, v{vACC+r} row_ror:8 row_mask:0xf bank_mask:0xf')
    a(f'''
    ds_write_b128 v46, v[{vACC}:{vACC+3}] offset:{L_QPART}
    s_waitcnt lgkmcnt(0)
    s_barrier
    s_cmp_lg_u32 s{sWAVE}, 1
    s_cbranch_scc1 L_krest
    v_lshlrev_b32 v44, 4, v{vLANE}
    s_mov_b32 exec_hi, 0
    ''')
    for i in range(7):
        a(f'ds_read_b128 v[{EX+4*i}:{EX+4*i+3}], v44 offset:{L_QPART + 512*i}')
    a(f's_add_u32 s{sT1}, s{sREC}, {R_QP}')
    a('s_waitcnt lgkmcnt(0)')
    for (x, y) in ((0, 1), (2, 3), (4, 5), (0, 2), (4, 6), (0, 4)):
        for r in range(4): a(f'v_add_f32 v{EX+4*x+r}, v{EX+4*x+r}, v{EX+4*y+r}')
    a(f'''
    buffer_store_dwordx4 v[{EX}:{EX+3}], v44, s[{rWS}:{rWS+3}], s{sT1} offen sc1
    s_mov_b32 exec_hi, -1
    s_branch L_krest
    ''')
    a.label('L_service')
    a(f'''
    v_mov_b32 v{EX}, -1
    v_mov_b32 v{EX+1}, -1
    v_mov_b32 v{EX+2}, -1
    v_mov_b32 v{EX+3}, -1
    v_lshlrev_b32 v44, 4, v{vLANE}
    buffer_store_dwordx4 v[{EX}:{EX+3}], v44, s[{rWS}:{rWS+3}], s{sREC} offen sc1
    buffer_store_dwordx4 v[{EX}:{EX+3}], v44, s[{rWS}:{rWS+3}], s{sREC} offen offset:1024 sc1
    buffer_store_dwordx4 v[{EX}:{EX+3}], v44, s[{rWS}:{rWS+3}], s{sREC} offen offset:2048 sc1
    v_mov_b32 v45, 0
    ds_write_b32 v45, v45 offset:{L_FLAG}
    v_lshlrev_b32 v46, 2, v{vLANE}
    s_mov_b64 exec, 0xffff
    ds_write_b32 v46, v{EX} offset:{L_MLW}
    s_mov_b64 exec, -1
    ''')
    srd(a, rK, sK, f's{sT0}', 32768)
    srd(a, rV, sV, f's{sT0}', 32768)
    a(f'''
    s_barrier
    s_lshl_b32 s{sT1}, s{sH}, 4
    v_mov_b32 v46, 1
    s_waitcnt vmcnt(0) lgkmcnt(0)
    buffer_atomic_add v46, v45, s[{rDBG}:{rDBG+3}], s{sT1} offen sc1
    '''.replace('buffer_atomic_add', 's_mov_b64 exec, 1\n    buffer_atomic_add') + 's_mov_b64 exec, -1\n')
    stamp(a, 1)
    a('s_barrier')
    masks(a, vLANE, 46)
    a('v_mov_b32 v45, 0')
    l, d = spin_head(a)
    a(f'''
    buffer_load_dword v47, v45, s[{rDBG}:{rDBG+3}], s{sT1} offen sc1
    s_waitcnt vmcnt(0)
    v_readfirstlane_b32 s{sT2}, v47
    s_cmp_ge_u32 s{sT2}, 16
    s_cbranch_scc1 {d}
    ''')
    spin_tail(a, l, d)
    stamp(a, 2)
    a(f'''
    v_lshrrev_b32 v44, 4, v{vLANE}
    v_and_b32 v45, 15, v{vLANE}
    v_lshlrev_b32 v45, 4, v45
    v_lshl_add_u32 v44, v44, 16, v45
    s_lshl_b32 s{sT1}, s{sWBASE}, 12
    s_lshl_b32 s{sT2}, s{sB}, 8
    s_add_u32 s{sT1}, s{sT1}, s{sT2}
    s_add_u32 s{sT1}, s{sT1}, {R_QP}
    s_add_u32 s{sT2}, s{sT1}, {4*65536}
    s_add_u32 s{sT3}, s{sT1}, {8*65536}
    s_add_u32 s{sT4}, s{sT1}, {12*65536}
    ''')
    l, d = spin_head(a)
    for cq in range(4):
        a(f'buffer_load_dwordx4 v[{EX+4*cq}:{EX+4*cq+3}], v44, s[{rWS}:{rWS+3}], s{sT1+cq} offen sc1')
    a('s_waitcnt vmcnt(0)')
    a(f'v_max3_u32 v46, v{EX}, v{EX+1}, v{EX+2}')
    for i in range(3, 15, 2): a(f'v_max3_u32 v46, v46, v{EX+i}, v{EX+i+1}')
    a(f'''
    v_max_u32 v46, v46, v{EX+15}
    v_cmp_eq_u32 vcc, -1, v46
    s_cbranch_vccz {d}
    ''')
    spin_tail(a, l, d)
    stamp(a, 3)
    for i in range(4):
        a(f'v_permlane32_swap_b32 v{EX+i}, v{EX+4+i}')
        a(f'v_permlane32_swap_b32 v{EX+8+i}, v{EX+12+i}')
    for i in range(4):
        a(f'v_add_f32 v{EX+i}, v{EX+i}, v{EX+4+i}')
        a(f'v_add_f32 v{EX+8+i}, v{EX+8+i}, v{EX+12+i}')
    for i in range(4): a(f'v_permlane16_swap_b32 v{EX+i}, v{EX+8+i}')
    for i in range(4): a(f'v_add_f32 v{EX+i}, v{EX+i}, v{EX+8+i}')
    a(f'''
    v_cvt_pk_bf16_f32 v{EX}, v{EX}, v{EX+1}
    v_cvt_pk_bf16_f32 v{EX+1}, v{EX+2}, v{EX+3}
    v_bfe_u32 v45, v{vLANE}, 4, 1
    v_lshlrev_b32 v45, 8, v45
    v_lshrrev_b32 v46, 5, v{vLANE}
    v_lshl_add_u32 v45, v46, 7, v45
    v_and_b32 v46, 15, v{vLANE}
    v_lshl_add_u32 v45, v46, 3, v45
    ds_write_b64 v45, v[{EX}:{EX+1}] offset:{L_QB}
    v_mov_b32 v46, 0
    v_mov_b32 v47, 1
    s_waitcnt lgkmcnt(0)
    ds_write_b32 v46, v47 offset:{L_FLAG}
    ''')
    for n in range(cfg.k0): kv_load(rK, n >> 1, n & 1, {})
    a.label('L_krest')
    base = a.vm_issued
    for n in range(cfg.k0): kseq[(n >> 1, n & 1)] = base - cfg.k0 + n
    for n in range(cfg.k0, 32): kv_load(rK, n >> 1, n & 1, kseq)
    a('v_mov_b32 v46, 0')
    l, d = spin_head(a)
    a(f'''
    ds_read_b32 v47, v46 offset:{L_FLAG}
    s_waitcnt lgkmcnt(0)
    v_readfirstlane_b32 s{sT2}, v47
    s_cmp_eq_u32 s{sT2}, 1
    s_cbranch_scc1 {d}
    s_sleep 2
    ''')
    a(f'''
    s_add_u32 s{sSPIN}, s{sSPIN}, 1
    s_cmp_lt_u32 s{sSPIN}, {cfg.spin*16}
    s_cbranch_scc1 {l}
    ''')
    a.label(d)
    a(f'''
    v_and_b32 v44, 15, v{vLANE}
    v_lshlrev_b32 v44, 4, v44
    ds_read_b128 v[{vQ}:{vQ+3}], v44 offset:{L_QB}
    ds_read_b128 v[{vQ+4}:{vQ+7}], v44 offset:{L_QB+256}
    s_waitcnt lgkmcnt(0)
    ''')
    stamp(a, 4)
    S = vS
    for qd in range(4):
        ts = [4*qd + i for i in range(4)]
        a.vm_wait(kseq[(ts[-1], 1)])
        for k in range(4):
            for i, t in enumerate(ts):
                r = KV + 8*t
                c0 = '0' if k == 0 else f'v{S+t}'
                c1 = '0' if k == 0 else f'v{44+i}'
                a(f'v_dot2_f32_bf16 v{S+t}, v{r+k}, v{vQ+k}, {c0}')
                a(f'v_dot2_f32_bf16 v{44+i}, v{r+4+k}, v{vQ+4+k}, {c1}')
        for t in ts:
            if t < cfg.nv0:
                for hf in range(2): kv_load(rV, t, hf, vseq)
        for i, t in enumerate(ts): a(f'v_add_f32 v{S+t}, v{S+t}, v{44+i}')
        for ror in (8, 4, 2, 1):
            for t in ts:
                a(f'v_add_f32_dpp v{S+t}, v{S+t}, v{S+t} row_ror:{ror} row_mask:0xf bank_mask:0xf')
    stamp(a, 5)
    a(f'''
    v_max3_f32 v44, v{S}, v{S+1}, v{S+2}
    v_max3_f32 v45, v{S+3}, v{S+4}, v{S+5}
    v_max3_f32 v46, v{S+6}, v{S+7}, v{S+8}
    v_max3_f32 v47, v{S+9}, v{S+10}, v{S+11}
    v_max3_f32 v44, v44, v{S+12}, v{S+13}
    v_max3_f32 v45, v45, v{S+14}, v{S+15}
    v_max3_f32 v44, v44, v45, v46
    v_max_f32 v44, v44, v47
    v_mov_b32 v45, v44
    v_permlane32_swap_b32 v44, v45
    v_max_f32 v44, v44, v45
    v_mov_b32 v45, v44
    v_permlane16_swap_b32 v44, v45
    v_max_f32 v44, v44, v45
    s_mov_b32 s{sT1}, {f2u(LOG2E/16.0):#x}
    v_mul_f32 v58, s{sT1}, v44
    ''')
    for t in range(16): a(f'v_fma_f32 v{S+t}, v{S+t}, s{sT1}, -v58')
    for t in range(16): a(f'v_exp_f32 v{S+t}, v{S+t}')
    for t in range(16): a(f'v_cvt_pk_bf16_f32 v{S+t}, v{S+t}, v{S+t}')
    a('v_mov_b32 v60, 0x3f80')
    for t in range(16):
        dst = 59 if t % 2 == 0 else 61
        c = '0' if t < 2 else f'v{dst}'
        a(f'v_dot2_f32_bf16 v{dst}, v{S+t}, v60, {c}')
    a(f'''
    v_add_f32 v59, v59, v61
    v_mov_b32 v45, v59
    v_permlane32_swap_b32 v59, v45
    v_add_f32 v59, v59, v45
    v_mov_b32 v45, v59
    v_permlane16_swap_b32 v59, v45
    v_add_f32 v59, v59, v45
    s_lshl_b32 s{sT1}, s{sWAVE}, 3
    v_mov_b32 v46, s{sT1}
    ds_write_b64 v46, v[58:59] offset:{L_MLW}
    ''')
    for t in range(16):
        for j in range(4): a(f'v_and_b32 v{vA+j}, v{S+t}, v{vM+j}')
        r = KV + 8*t
        for hf in range(2):
            a.vm_wait(vseq[(t, hf)])
            acc = vACC + 4*hf
            c = '0' if t == 0 else f'v[{acc}:{acc+3}]'
            a(f'v_mfma_f32_16x16x32_bf16 v[{acc}:{acc+3}], v[{vA}:{vA+3}], v[{r+4*hf}:{r+4*hf+3}], {c}')
        tn = t + cfg.nv0
        if tn < 16:
            for hf in range(2): kv_load(rV, tn, hf, vseq)
    stamp(a, 6)
    a(f'''
    v_and_b32 v44, 15, v{vLANE}
    v_lshrrev_b32 v45, 4, v{vLANE}
    v_lshlrev_b32 v44, 5, v44
    v_lshl_add_u32 v44, v45, 4, v44
    s_lshl_b32 s{sT1}, s{sWAVE}, 10
    v_add_u32 v48, s{sT1}, v44
    s_mov_b32 exec_hi, 0
    ds_write_b128 v48, v[{vACC}:{vACC+3}] offset:{L_OPART}
    ds_write_b128 v48, v[{vACC+4}:{vACC+7}] offset:{L_OPART+512}
    s_mov_b32 exec_hi, -1
    s_cmp_ge_u32 s{sWAVE}, 4
    s_cbranch_scc1 L_young
    ''')
    a(f'''
    s_lshr_b32 s{sT0}, s{sJ}, 2
    s_lshl_b32 s{sT1}, s{sH}, 2
    s_add_u32 s{sT0}, s{sT0}, s{sT1}
    s_and_b32 s{sJ}, s{sJ}, 3
    ''')
    sFS, sCB = sT0, sJ
    a(f's_mul_i32 s{sT1}, s{sFS}, {64*896}')
    srd(a, rT1, sWO, f's{sT1}', 64*896)
    srd(a, rT2, sX, None, 1792)
    srd(a, rT3, sGATE, None, 896)
    a(f'''
    v_lshrrev_b32 v46, 4, v{vLANE}
    v_and_b32 v47, 15, v{vLANE}
    v_lshlrev_b32 v47, 4, v47
    s_mul_i32 s{sT1}, s{sCB}, 224
    v_add_u32 v47, s{sT1}, v47
    s_lshl_b32 s{sT1}, s{sWAVE}, 2
    v_add_u32 v49, s{sT1}, v46
    v_mul_u32_u24 v49, {4*896}, v49
    v_add_u32 v49, v49, v47
    v_lshlrev_b32 v50, 4, v{vLANE}
    buffer_load_dwordx4 v[{EX+16}:{EX+19}], v50, s[{rT2}:{rT2+3}], 0 offen
    buffer_load_dwordx4 v[{EX+20}:{EX+23}], v50, s[{rT2}:{rT2+3}], 0 offen offset:896
    buffer_load_dwordx4 v[{EX+24}:{EX+27}], v50, s[{rT3}:{rT3+3}], 0 offen
    ''')
    gate_mark = a.vm_mark()
    for t in range(4):
        a(f'buffer_load_dwordx4 v[{EX+4*t}:{EX+4*t+3}], v49, s[{rT1}:{rT1+3}], 0 offen offset:{896*t}')
    a(f'''
    s_cmp_eq_u32 s{sWAVE}, 1
    s_cbranch_scc1 L_ffn
    v_mov_b32 v12, 0
    v_mov_b32 v13, 0
    v_mov_b32 v14, 0
    v_mov_b32 v15, 0
    s_branch L_ffn_done
    ''')
    a.label('L_ffn')
    a(f'''
    s_cmp_lt_u32 s{sFS}, 56
    s_cselect_b32 s{sT5}, -1, 0
    s_lshl_b32 s{sT1}, s{sFS}, 6
    ''')
    srd(a, rT1, sW1, f's{sT1}', 447*3584+64)
    a(f's_and_b32 s{rT1+2}, s{rT1+2}, s{sT5}')
    a(f'''
    v_lshrrev_b32 v51, 2, v{vLANE}
    v_mul_u32_u24 v52, 56, v51
    v_mul_u32_u24 v51, {28*3584}, v51
    v_and_b32 v53, 3, v{vLANE}
    v_lshl_add_u32 v51, v53, 4, v51
    ''')
    XP = 176
    XQ = 222
    for (base, off) in ((XP, 0), (XQ, 896)):
        a(f'buffer_load_dwordx4 v[{base}:{base+3}], v52, s[{rT2}:{rT2+3}], 0 offen offset:{off}')
        a(f'buffer_load_dwordx4 v[{base+4}:{base+7}], v52, s[{rT2}:{rT2+3}], 0 offen offset:{off+16}')
        a(f'buffer_load_dwordx4 v[{base+8}:{base+11}], v52, s[{rT2}:{rT2+3}], 0 offen offset:{off+32}')
        a(f'buffer_load_dwordx2 v[{base+12}:{base+13}], v52, s[{rT2}:{rT2+3}], 0 offen offset:{off+48}')
    a(f's_mov_b32 s{sT1}, 0')
    w1seq = []
    for n in range(28):
        r = KV + 4*n
        a(f'buffer_load_dwordx4 v[{r}:{r+3}], v51, s[{rT1}:{rT1+3}], s{sT1} offen offset:{3584*(n&1)}')
        w1seq.append(a.vm_mark())
        if n & 1 and n < 27: a(f's_add_u32 s{sT1}, s{sT1}, 7168')
    a(f's_lshl_b32 s{sT1}, s{sFS}, 6')
    srd(a, rT3, sB1, f's{sT1}', 64)
    a(f's_and_b32 s{rT3+2}, s{rT3+2}, s{sT5}')
    a(f'''
    v_lshlrev_b32 v53, 4, v53
    v_bfe_u32 v54, v{vLANE}, 4, 1
    v_lshl_add_u32 v53, v54, 3, v53
    buffer_load_dwordx2 v[56:57], v53, s[{rT3}:{rT3+3}], 0 offen
    ''')
    srd(a, rT3, sB2, None, 896)
    a(f'''
    s_cmp_eq_u32 s{sFS}, 0
    s_cselect_b32 s{rT3+2}, 896, 0
    v_lshl_add_u32 v54, v54, 3, v47
    v_mov_b32 v55, v47
    buffer_load_dwordx2 v[62:63], v54, s[{rT3}:{rT3+3}], 0 offen
    ''')
    small_mark = a.vm_mark()
    ACC = 190
    ACC = 28
    a(f's_mov_b32 s{sT2}, 0x05040100\ns_mov_b32 s{sT3}, 0x07060302')
    for p in range(14):
        a.vm_wait(w1seq[2*p+1])
        for q in range(4):
            w0 = KV + 8*p + q; w1_ = w0 + 4
            a(f'v_perm_b32 v{44+2*(q&1)}, v{w1_}, v{w0}, s{sT2}')
            a(f'v_perm_b32 v{45+2*(q&1)}, v{w1_}, v{w0}, s{sT3}')
            for b in range(2):
                for e in range(2):
                    dd = ACC + b*8 + 2*q + e
                    c = '0' if p == 0 else f'v{dd}'
                    a(f'v_dot2_f32_bf16 v{dd}, v{44+2*(q&1)+e}, v{(XP if b == 0 else XQ)+p}, {c}')
    a(f's_mul_i32 s{sT1}, s{sFS}, {32*896}')
    srd(a, rT1, sW2, f's{sT1}', 32*896)
    a(f'''
    s_and_b32 s{rT1+2}, s{rT1+2}, s{sT5}
    v_lshrrev_b32 v46, 4, v{vLANE}
    v_mul_u32_u24 v46, 896, v46
    v_add_u32 v46, v46, v55
    s_mov_b32 s{sT1}, 0
    ''')
    w2seq = []
    for u in range(8):
        a(f'buffer_load_dwordx4 v[{KV+4*u}:{KV+4*u+3}], v46, s[{rT1}:{rT1+3}], s{sT1} offen offset:{3584*(u&1)}')
        w2seq.append(a.vm_mark())
        if u & 1 and u < 7: a(f's_add_u32 s{sT1}, s{sT1}, 7168')
    for f in range(8): a(f'v_permlane32_swap_b32 v{ACC+f}, v{ACC+8+f}')
    for f in range(8): a(f'v_add_f32 v{ACC+f}, v{ACC+f}, v{ACC+8+f}')
    for f in range(4): a(f'v_permlane16_swap_b32 v{ACC+f}, v{ACC+4+f}')
    for f in range(4): a(f'v_add_f32 v{ACC+f}, v{ACC+f}, v{ACC+4+f}')
    for ror in (4, 8):
        for f in range(4):
            a(f'v_add_f32_dpp v{ACC+f}, v{ACC+f}, v{ACC+f} row_ror:{ror} row_mask:0xf bank_mask:0xf')
    a.vm_wait(small_mark)
    a(f'''
    v_lshlrev_b32 v36, 16, v56
    v_and_b32 v37, 0xffff0000, v56
    v_lshlrev_b32 v38, 16, v57
    v_and_b32 v39, 0xffff0000, v57
    ''')
    for f in range(4): a(f'v_add_f32 v{ACC+f}, v{ACC+f}, v{36+f}')
    c1 = -2*0.7978845608028654*LOG2E
    a(f's_mov_b32 s{sT2}, {f2u(c1*0.044715):#x}')
    for f in range(4): a(f'v_mul_f32 v{36+f}, v{ACC+f}, v{ACC+f}')
    a(f'v_mov_b32 v40, {f2u(c1):#x}')
    for f in range(4): a(f'v_fma_f32 v{36+f}, v{36+f}, s{sT2}, v40')
    for f in range(4): a(f'v_mul_f32 v{36+f}, v{36+f}, v{ACC+f}')
    for f in range(4): a(f'v_exp_f32 v{36+f}, v{36+f}')
    for f in range(4): a(f'v_add_f32 v{36+f}, 1.0, v{36+f}')
    for f in range(4): a(f'v_rcp_f32 v{36+f}, v{36+f}')
    for f in range(4): a(f'v_mul_f32 v{ACC+f}, v{ACC+f}, v{36+f}')
    for f in range(4): a(f'v_cvt_pk_bf16_f32 v{ACC+f}, v{ACC+f}, v{ACC+f}')
    a(f'''
    v_lshrrev_b32 v36, 5, v{vLANE}
    v_lshlrev_b32 v36, 7, v36
    v_and_b32 v37, 3, v{vLANE}
    v_lshl_add_u32 v36, v37, 5, v36
    v_bfe_u32 v37, v{vLANE}, 4, 1
    v_lshl_add_u32 v36, v37, 4, v36
    ds_write_b128 v36, v[{ACC}:{ACC+3}] offset:{L_H1}
    v_bfe_u32 v48, v{vLANE}, 3, 1
    v_lshlrev_b32 v48, 5, v48
    v_lshrrev_b32 v38, 4, v{vLANE}
    v_add_u32 v48, v48, v38
    v_lshlrev_b32 v48, 2, v48
    s_waitcnt lgkmcnt(0)
    ''')
    for u in range(8): a(f'ds_read_b32 v{36+u}, v48 offset:{L_H1 + 16*u}')
    a(f'''
    v_lshlrev_b32 v12, 16, v62
    v_and_b32 v13, 0xffff0000, v62
    v_lshlrev_b32 v14, 16, v63
    v_and_b32 v15, 0xffff0000, v63
    s_waitcnt lgkmcnt(0)
    ''')
    for u in range(8):
        src = 36+u
        for j in range(4): a(f'v_and_b32 v{vA+j}, v{src}, v{vM+j}')
        a.vm_wait(w2seq[u])
        a(f'v_mfma_f32_16x16x32_bf16 v[12:15], v[{vA}:{vA+3}], v[{KV+4*u}:{KV+4*u+3}], v[12:15]')
    a.label('L_ffn_done')
    a('s_waitcnt vmcnt(0)')
    stamp(a, 7)
    X0, X1, GW = EX+16, EX+20, EX+24
    for b in range(2):
        for k in range(4):
            c = '0' if k == 0 else f'v{46+b}'
            a(f'v_dot2_f32_bf16 v{46+b}, v{(X0 if b == 0 else X1)+k}, v{GW+k}, {c}')
    a('v_permlane32_swap_b32 v46, v47\nv_add_f32 v46, v46, v47')
    for ror in (8, 4, 2, 1):
        a(f'v_add_f32_dpp v46, v46, v46 row_ror:{ror} row_mask:0xf bank_mask:0xf')
    a(f'''
    v_mov_b32 v47, v46
    v_permlane16_swap_b32 v46, v47
    v_add_f32 v46, v46, v47
    v_mul_f32 v46, {f2u(-LOG2E):#x}, v46
    v_exp_f32 v46, v46
    v_add_f32 v46, 1.0, v46
    v_rcp_f32 v46, v46
    v_readlane_b32 s{sG0}, v46, 0
    v_readlane_b32 s{sG1}, v46, 32
    v_sub_f32 v47, 1.0, v46
    ''')
    for r in range(4): a(f'v_mul_f32 v{12+r}, v{12+r}, v47')
    a('v_mov_b32 v46, 0')
    l, d = spin_head(a)
    for i in range(4): a(f'ds_read_b128 v[{28+4*i}:{31+4*i}], v46 offset:{L_MLW+16*i}')
    a('s_waitcnt lgkmcnt(0)')
    a('v_max3_u32 v47, v28, v29, v30')
    for i in range(31, 43, 2): a(f'v_max3_u32 v47, v47, v{i}, v{i+1}')
    a(f'''
    v_max_u32 v47, v47, v43
    v_cmp_eq_u32 vcc, -1, v47
    s_cbranch_vccz {d}
    s_sleep 4
    s_add_u32 s{sSPIN}, s{sSPIN}, 1
    s_cmp_lt_u32 s{sSPIN}, {cfg.spin*16}
    s_cbranch_scc1 {l}
    ''')
    a.label(d)
    a('''
    v_max3_f32 v58, v28, v30, v32
    v_max3_f32 v58, v58, v34, v36
    v_max3_f32 v58, v58, v38, v40
    v_max_f32 v58, v58, v42
    ''')
    for w in range(8): a(f'v_sub_f32 v{28+2*w}, v{28+2*w}, v58')
    for w in range(8): a(f'v_exp_f32 v{28+2*w}, v{28+2*w}')
    a('v_mul_f32 v59, v28, v29')
    for w in range(1, 8): a(f'v_fma_f32 v59, v{28+2*w}, v{29+2*w}, v59')
    skip = newlabel('noml')
    a(f'''
    s_cmp_lg_u32 s{sWAVE}, 0
    s_cbranch_scc1 {skip}
    s_add_u32 s{sT1}, s{sREC}, {R_ML}
    v_mov_b32 v46, 0
    s_mov_b64 exec, 1
    buffer_store_dwordx2 v[58:59], v46, s[{rWS}:{rWS+3}], s{sT1} offen sc1
    s_mov_b64 exec, -1
    ''')
    a(f'''
    s_cmp_ge_u32 s2, 32
    s_cbranch_scc1 {skip}
    v_and_b32 v46, 15, v{vLANE}
    v_lshlrev_b32 v46, 4, v46
    ''')
    l, d = spin_head(a)
    a(f'''
    buffer_load_dword v47, v46, s[{rDBG}:{rDBG+3}], 0 offen sc1
    s_waitcnt vmcnt(0)
    v_cmp_gt_u32 vcc, 16, v47
    s_cbranch_vccz {d}
    ''')
    spin_tail(a, l, d)
    a.label(skip)
    a(f'''
    v_bfe_u32 v46, v{vLANE}, 3, 1
    v_and_b32 v47, 7, v{vLANE}
    v_lshl_add_u32 v46, v47, 1, v46
    v_lshlrev_b32 v46, 16, v46
    s_lshl_b32 s{sT1}, s{sWBASE}, 12
    s_add_u32 s{sT2}, s{sT1}, {R_ML}
    ''')
    l, d = spin_head(a)
    a(f'''
    buffer_load_dwordx2 v[44:45], v46, s[{rWS}:{rWS+3}], s{sT2} offen sc1
    s_waitcnt vmcnt(0)
    v_max_u32 v47, v44, v45
    v_cmp_eq_u32 vcc, -1, v47
    s_cbranch_vccz {d}
    ''')
    spin_tail(a, l, d)
    def allred8(op, r):
        for mode in ('quad_perm:[1,0,3,2]', 'quad_perm:[2,3,0,1]', 'row_half_mirror'):
            a(f'{op}_dpp v{r}, v{r}, v{r} {mode} row_mask:0xf bank_mask:0xf')
    a('v_mov_b32 v47, v44')
    allred8('v_max_f32', 47)
    a('''
    v_sub_f32 v44, v44, v47
    v_exp_f32 v44, v44
    s_nop 0
    v_mul_f32 v45, v44, v45
    ''')
    allred8('v_add_f32', 45)
    a(f'''
    v_rcp_f32 v45, v45
    v_bfe_u32 v47, v{vLANE}, 3, 1
    v_cmp_eq_u32 vcc, 1, v47
    v_mov_b32 v47, s{sG0}
    v_mov_b32 v49, s{sG1}
    v_cndmask_b32 v47, v47, v49, vcc
    v_mul_f32 v44, v44, v45
    v_mul_f32 v60, v44, v47
    ''')
    a(f'''
    v_lshrrev_b32 v47, 4, v{vLANE}
    v_lshl_add_u32 v61, v47, 4, v46
    s_and_b32 s{sT2}, s{sFS}, 3
    s_lshl_b32 s{sT2}, s{sT2}, 8
    s_add_u32 s{sT1}, s{sT1}, s{sT2}
    s_lshl_b32 s{sT2}, s{sWAVE}, 6
    s_add_u32 s{sT1}, s{sT1}, s{sT2}
    v_lshlrev_b32 v49, 2, v0
    s_waitcnt lgkmcnt(0)
    ''')
    stamp(a, 8)
    a('s_barrier')
    for i in range(4):
        a(f'ds_read2st64_b32 v[{50+2*i}:{51+2*i}], v49 offset0:{L_OPART//256 + 8*i} offset1:{L_OPART//256 + 8*i+4}')
    a('s_waitcnt lgkmcnt(0)')
    a('v_mul_f32 v50, v50, v28')
    for w in range(1, 8): a(f'v_fma_f32 v50, v{50+w}, v{28+2*w}, v50')
    a(f'buffer_store_dword v50, v49, s[{rWS}:{rWS+3}], s{sREC} offen sc1')
    l, d = spin_head(a)
    a(f'''
    buffer_load_dwordx4 v[44:47], v61, s[{rWS}:{rWS+3}], s{sT1} offen sc1
    s_waitcnt vmcnt(0)
    v_max3_u32 v52, v44, v45, v46
    v_max_u32 v52, v52, v47
    v_cmp_eq_u32 vcc, -1, v52
    s_cbranch_vccz {d}
    ''')
    spin_tail(a, l, d)
    for t in range(4): a(f'v_mul_f32 v{44+t}, v{44+t}, v60')
    for mode in ('quad_perm:[1,0,3,2]', 'quad_perm:[2,3,0,1]', 'row_half_mirror'):
        for t in range(4):
            a(f'v_add_f32_dpp v{44+t}, v{44+t}, v{44+t} {mode} row_mask:0xf bank_mask:0xf')
    for t in range(4): a(f'v_cvt_pk_bf16_f32 v{44+t}, v{44+t}, v{44+t}')
    for t in range(4):
        base = vA if t % 2 == 0 else 52
        for j in range(4): a(f'v_and_b32 v{base+j}, v{44+t}, v{vM+j}')
        a(f'v_mfma_f32_16x16x32_bf16 v[12:15], v[{base}:{base+3}], v[{EX+4*t}:{EX+4*t+3}], v[12:15]')
    a(f'''
    v_lshlrev_b32 v48, 4, v{vLANE}
    s_lshl_b32 s{sT1}, s{sWAVE}, 10
    v_add_u32 v49, s{sT1}, v48
    ds_write_b128 v49, v[12:15] offset:{L_R2}
    s_waitcnt lgkmcnt(0)
    s_barrier
    s_cmp_lg_u32 s{sWAVE}, 0
    s_cbranch_scc1 L_after_o2
    ''')
    for i in range(4): a(f'ds_read_b128 v[{28+4*i}:{31+4*i}], v48 offset:{L_R2+1024*i}')
    a(f'''
    v_and_b32 v50, 15, v{vLANE}
    v_bfe_u32 v51, v{vLANE}, 4, 1
    v_lshlrev_b32 v52, 1, v50
    v_add_u32 v52, v52, v51
    v_mul_u32_u24 v53, 37, v52
    v_lshrrev_b32 v53, 8, v53
    v_add_u32 v52, v52, v53
    v_lshlrev_b32 v52, 4, v52
    v_lshrrev_b32 v53, 5, v{vLANE}
    v_lshl_add_u32 v52, v53, 9, v52
    s_add_u32 s{sT1}, s{sREC}, {R_O2}
    v_cmp_gt_u32 vcc, 14, v50
    s_waitcnt lgkmcnt(0)
    ''')
    for r in range(4): a(f'v_add_f32 v{28+r}, v{28+r}, v{32+r}')
    for r in range(4): a(f'v_add_f32 v{36+r}, v{36+r}, v{40+r}')
    for r in range(4): a(f'v_add_f32 v{28+r}, v{28+r}, v{36+r}')
    a(f'''
    s_and_b64 exec, exec, vcc
    buffer_store_dwordx4 v[28:31], v52, s[{rWS}:{rWS+3}], s{sT1} offen sc1
    s_mov_b64 exec, -1
    s_branch L_after_o2
    ''')
    a.label('L_young')
    a(f'''
    s_waitcnt lgkmcnt(0)
    s_barrier
    s_cmp_ge_u32 s2, 32
    s_cbranch_scc1 L_fin
    s_barrier
    ''')
    a.label('L_after_o2')
    a(f'''
    s_cmp_ge_u32 s2, 32
    s_cbranch_scc1 L_fin
    ''')
    stamp(a, 9)
    a(f'''
    v_lshrrev_b32 v44, 6, v0
    v_bfe_u32 v45, v0, 3, 3
    v_lshl_add_u32 v44, v44, 3, v45
    v_lshrrev_b32 v45, 3, v44
    v_bfe_u32 v46, v44, 2, 1
    v_lshl_add_u32 v45, v46, 3, v45
    v_and_b32 v46, 3, v44
    v_lshl_add_u32 v45, v46, 6, v45
    v_lshlrev_b32 v45, 12, v45
    v_and_b32 v46, 7, v0
    v_lshl_add_u32 v45, v46, 4, v45
    s_bfe_u32 s{sT1}, s2, 0x20001
    s_lshl_b32 s{sT1}, s{sT1}, 16
    s_and_b32 s{sT2}, s2, 1
    s_lshl_b32 s{sT2}, s{sT2}, 9
    s_add_u32 s{sT1}, s{sT1}, s{sT2}
    s_bfe_u32 s{sT2}, s2, 0x20003
    s_lshl_b32 s{sT2}, s{sT2}, 7
    s_add_u32 s{sT1}, s{sT1}, s{sT2}
    s_add_u32 s{sT1}, s{sT1}, {R_O2}
    v_cmp_gt_u32 vcc, 7, v46
    s_mov_b64 s[{sT4}:{sT4+1}], vcc
    v_mov_b32 v48, 0
    v_mov_b32 v49, 0
    v_mov_b32 v50, 0
    v_mov_b32 v51, 0
    s_mov_b64 exec, s[{sT4}:{sT4+1}]
    ''')
    l, d = spin_head(a)
    a(f'''
    buffer_load_dwordx4 v[48:51], v45, s[{rWS}:{rWS+3}], s{sT1} offen sc1
    s_waitcnt vmcnt(0)
    v_max3_u32 v52, v48, v49, v50
    v_max_u32 v52, v52, v51
    v_cmp_eq_u32 vcc, -1, v52
    s_cbranch_vccz {d}
    ''')
    spin_tail(a, l, d)
    a('s_mov_b64 exec, -1')
    for r in range(4):
        a(f'v_add_f32_dpp v{48+r}, v{48+r}, v{48+r} row_ror:8 row_mask:0xf bank_mask:0xf')
    a(f'''
    v_permlane32_swap_b32 v48, v49
    v_permlane32_swap_b32 v50, v51
    v_add_f32 v48, v48, v49
    v_add_f32 v50, v50, v51
    v_permlane16_swap_b32 v48, v50
    v_add_f32 v48, v48, v50
    v_and_b32 v52, 7, v{vLANE}
    v_lshlrev_b32 v52, 2, v52
    v_bfe_u32 v53, v{vLANE}, 4, 1
    v_lshl_add_u32 v52, v53, 1, v52
    v_lshrrev_b32 v53, 5, v{vLANE}
    v_add_u32 v52, v52, v53
    v_lshlrev_b32 v52, 2, v52
    s_lshl_b32 s{sT2}, s{sWAVE}, 7
    v_add_u32 v52, s{sT2}, v52
    ds_write_b32 v52, v48 offset:{L_R3}
    s_waitcnt lgkmcnt(0)
    s_barrier
    s_cmp_lg_u32 s{sWAVE}, 0
    s_cbranch_scc1 L_fin
    v_and_b32 v52, 31, v{vLANE}
    v_lshlrev_b32 v53, 2, v52
    v_add_u32 v53, {L_R3}, v53
    ''')
    for i in range(4):
        a(f'ds_read2_b32 v[{28+2*i}:{29+2*i}], v53 offset0:{64*i} offset1:{64*i+32}')
    srd(a, rT1, sOUT, None, 1792)
    a(f'''
    s_and_b32 s{sT1}, s2, 1
    s_mul_i32 s{sT1}, s{sT1}, 896
    s_bfe_u32 s{sT2}, s2, 0x20001
    s_mul_i32 s{sT2}, s{sT2}, 224
    s_add_u32 s{sT1}, s{sT1}, s{sT2}
    s_bfe_u32 s{sT2}, s2, 0x20003
    s_mul_i32 s{sT2}, s{sT2}, 56
    s_add_u32 s{sT1}, s{sT1}, s{sT2}
    s_waitcnt lgkmcnt(0)
    v_add_f32 v28, v28, v29
    v_add_f32 v30, v30, v31
    v_add_f32 v32, v32, v33
    v_add_f32 v34, v34, v35
    v_add_f32 v28, v28, v30
    v_add_f32 v32, v32, v34
    v_add_f32 v28, v28, v32
    v_cvt_pk_bf16_f32 v28, v28, v28
    v_lshlrev_b32 v53, 1, v52
    s_mov_b64 exec, 0x0fffffff
    buffer_store_short v28, v53, s[{rT1}:{rT1+3}], s{sT1} offen
    ''')
    a.label('L_fin')
    if cfg.ts:
        a('s_waitcnt vmcnt(0)')
        a(f's_memrealtime s[{sTS+18}:{sTS+19}]' if False else '')
        a(f's_memrealtime s[{sG0}:{sG0+1}]')
        a('s_waitcnt lgkmcnt(0)')
        a(f's_mov_b32 s{sTS+1}, s{sG0}')
        stamp_flush(a, 10)
        a(f'v_mov_b32 v45, s{sTS+1}\nbuffer_store_dword v45, v44, s[{rWS}:{rWS+3}], s{sT0} offen offset:40')
    a.label('L_end')
    a('s_endpgm')
    return a

HEADER = open(os.path.join(os.path.dirname(__file__), '..', 'cdna_kernels', NAME + '.s.ref')).read().split('; Override launch')[0]

def emit(out):
    a = build()
    label = NAME + '_kernel'
    body = fmt(pad([l for l in a.lines if l], True))
    nv = 240
    txt = HEADER + f'; @launch grid=(256,1,1) block=(512,1,1) lds={L_END}\n'
    txt += f'''.amdgcn_target "amdgcn-amd-amdhsa--gfx950"
.text
.globl {label}
.p2align 8
.type {label},@function
{label}:
{body}
.section .rodata,"a"
.p2align 6
.amdhsa_kernel {label}
  .amdhsa_next_free_vgpr {nv}
  .amdhsa_next_free_sgpr 102
  .amdhsa_accum_offset {nv}
  .amdhsa_group_segment_fixed_size 0
  .amdhsa_kernarg_size 112
  .amdhsa_user_sgpr_count 2
  .amdhsa_user_sgpr_kernarg_segment_ptr 1
  .amdhsa_system_sgpr_workgroup_id_x 1
.end_amdhsa_kernel
'''
    open(out, 'w').write(txt)

if __name__ == '__main__':
    for o in sys.argv[2:]:
        if '=' in o:
            k, v = o.split('='); setattr(cfg, k, int(v, 0))
        elif o == 'ts': cfg.ts = True
        elif o == 'nont': cfg.nt = False
    emit(sys.argv[1])
```

```python
import sys, os, struct
sys.path.insert(0, os.path.dirname(__file__))
from asmlib import Asm, pad, fmt

NAME = 'gated_mix__mha_block_cached__dense_activation_gelu__decode'
LOG2E = 1.4426950408889634
def f2u(x): return struct.unpack('<I', struct.pack('<f', x))[0]

class Cfg:
    nt = True
    ntk = 1
    ntv = 1
    ts = False
    nv0 = 8
    k0 = 8
    spin = 1 << 16
cfg = Cfg()

R_OP, R_QP, R_ML, R_O2 = 0, 1024, 1536, 2048
WS_BYTES = 0x100000
TS_OFF = 0x100000
L_QPART, L_QB, L_FLAG, L_MLW, L_H1, L_OPART, L_R2, L_R3, L_END = 0, 3584, 4096, 4112, 4224, 8192, 16384, 20480, 21504

sX, sK, sV, sWQ, sWO, sW1, sB1, sW2, sB2, sGATE, sOUT, sDBG, sWS = 4, 6, 8, 10, 12, 16, 18, 20, 22, 24, 26, 28, 30
sWBASE, sWAVE, sH, sB, sJ = 3, 32, 33, 34, 35
rK, rV, rWS, rT1, rT2, rT3, rDBG = 36, 40, 44, 48, 52, 56, 60
sO = 64
sSPIN, sREC, sT0, sT1, sT2, sT3, sT4, sT5 = 72, 73, 74, 75, 76, 77, 78, 79
sTS = 80
sG0, sG1 = 100, 101
vLANE, vKV = 1, 2
vM, vA, vACC, vQ, vS, vT = 4, 8, 12, 20, 28, 44
KV = 64; EX = 192

def srd(a, d, base, off_s, nrec):
    if off_s is None:
        a(f's_mov_b32 s{d}, s{base}\ns_mov_b32 s{d+1}, s{base+1}')
    else:
        a(f's_add_u32 s{d}, s{base}, {off_s}\ns_addc_u32 s{d+1}, s{base+1}, 0')
    a(f's_mov_b32 s{d+2}, {nrec}\ns_mov_b32 s{d+3}, 0x20000')

def stamp(a, i):
    if cfg.ts: a(f's_memrealtime s[{sTS+2*i}:{sTS+2*i+1}]')

def stamp_flush(a, n=10):
    if not cfg.ts: return
    a('s_waitcnt lgkmcnt(0)')
    a('s_mov_b64 exec, -1')
    a(f's_lshl_b32 s{sT0}, s2, 3\ns_add_u32 s{sT0}, s{sT0}, s{sWAVE}\ns_lshl_b32 s{sT0}, s{sT0}, 6\ns_add_u32 s{sT0}, s{sT0}, {TS_OFF}')
    a(f's_mov_b32 s{rWS+2}, 0x200000')
    a('v_mov_b32 v44, 0')
    for i in range(n):
        a(f'v_mov_b32 v45, s{sTS+2*i}')
        a(f'buffer_store_dword v45, v44, s[{rWS}:{rWS+3}], s{sT0} offen offset:{4*i}')
        a('s_nop 1')

def masks(a, lane, tmp):
    a(f'''
    v_and_b32 v{tmp}, 1, v{lane}
    v_cmp_eq_u32 vcc, 1, v{tmp}
    v_mov_b32 v{tmp+1}, 0xffff
    v_mov_b32 v{tmp+2}, 0xffff0000
    v_cndmask_b32 v{tmp+1}, v{tmp+1}, v{tmp+2}, vcc
    v_bfe_u32 v{tmp}, v{lane}, 1, 2
    ''')
    for j in range(4):
        a(f'''
        v_cmp_eq_u32 vcc, {j}, v{tmp}
        v_cndmask_b32 v{vM+j}, 0, v{tmp+1}, vcc
        ''')

uid = [0]
def newlabel(p):
    uid[0] += 1
    return f'L_{p}_{uid[0]}'

def spin_head(a):
    l = newlabel('spin'); d = newlabel('done')
    a(f's_mov_b32 s{sSPIN}, 0')
    a.label(l)
    return l, d
def spin_tail(a, l, d):
    a(f'''
    s_add_u32 s{sSPIN}, s{sSPIN}, 1
    s_cmp_lt_u32 s{sSPIN}, {cfg.spin}
    s_cbranch_scc1 {l}
    ''')
    a.label(d)

def build():
    a = Asm()
    FL = ' nt' if cfg.nt else ''
    kseq = {}; vseq = {}
    def kv_load(srd_, t, hf, seqd):
        reg = KV + 8*t + 4*hf
        so = '0' if t < 2 else f's{sO + (t>>1)}'
        imm = hf*256 + (t & 1)*2048
        fl = FL if (cfg.ntk if srd_ == rK else cfg.ntv) else ''
        a(f'buffer_load_dwordx4 v[{reg}:{reg+3}], v{vKV}, s[{srd_}:{srd_+3}], {so} offen offset:{imm}{fl}')
        seqd[(t, hf)] = a.vm_mark()

    a(f'''
    s_cmp_ge_u32 s2, 256
    s_cbranch_scc1 L_end
    s_load_dwordx16 s[4:19], s[0:1], 0
    s_load_dwordx8 s[20:27], s[0:1], 64
    s_load_dwordx4 s[28:31], s[0:1], 96
    v_lshrrev_b32 v3, 6, v0
    v_and_b32 v{vLANE}, 63, v0
    v_readfirstlane_b32 s{sWAVE}, v3
    s_and_b32 s{sWBASE}, s2, 15
    s_and_b32 s{sH}, s2, 7
    s_lshl_b32 s{sH}, s{sH}, 1
    s_bfe_u32 s{sT0}, s2, 0x10003
    s_or_b32 s{sH}, s{sH}, s{sT0}
    s_lshr_b32 s{sJ}, s2, 4
    s_and_b32 s{sB}, s{sJ}, 1
    s_lshl_b32 s{sREC}, s2, 12
    v_and_b32 v44, 15, v{vLANE}
    v_lshrrev_b32 v45, 4, v{vLANE}
    v_lshlrev_b32 v44, 4, v44
    v_lshl_add_u32 v{vKV}, v45, 9, v44
    ''')
    a(f'''
    s_lshl_b32 s{sT0}, s{sB}, 4
    s_add_u32 s{sT0}, s{sT0}, s{sH}
    s_lshl_b32 s{sT0}, s{sT0}, 21
    s_lshr_b32 s{sT1}, s{sJ}, 1
    s_lshl_b32 s{sT1}, s{sT1}, 18
    s_add_u32 s{sT0}, s{sT0}, s{sT1}
    s_lshl_b32 s{sT1}, s{sWAVE}, 15
    s_add_u32 s{sT0}, s{sT0}, s{sT1}
    ''')
    for i in range(1, 8): a(f's_mov_b32 s{sO+i}, {4096*i}')
    a(f'''
    s_and_b32 s{sT1}, s{sJ}, 3
    s_mul_i32 s{sT1}, s{sT1}, 112
    s_lshl_b32 s{sT2}, s{sWAVE}, 4
    s_add_u32 s{sT1}, s{sT1}, s{sT2}
    s_sub_u32 s{sT1}, s{sT1}, 16
    s_lshl_b32 s{sT2}, s{sT1}, 13
    s_lshl_b32 s{sT3}, s{sH}, 9
    s_add_u32 s{sT2}, s{sT2}, s{sT3}
    s_lshr_b32 s{sT3}, s{sJ}, 2
    s_lshl_b32 s{sT3}, s{sT3}, 7
    s_add_u32 s{sT2}, s{sT2}, s{sT3}
    s_lshl_b32 s{sT1}, s{sT1}, 1
    s_waitcnt lgkmcnt(0)
    ''')
    srd(a, rWS, sWS, None, WS_BYTES)
    srd(a, rDBG, sDBG, None, 256)
    a(f's_cmp_eq_u32 s{sWAVE}, 0')
    stamp(a, 0)
    a('s_cbranch_scc1 L_service')
    srd(a, rT1, sWQ, f's{sT2}', 15*8192+128)
    srd(a, rT2, sX, None, 1792)
    a(f'''
    v_lshrrev_b32 v44, 3, v{vLANE}
    v_and_b32 v45, 7, v{vLANE}
    v_lshlrev_b32 v45, 4, v45
    v_lshl_add_u32 v44, v44, 13, v45
    s_mov_b32 s{sT3}, 65536
    buffer_load_dwordx4 v[{EX}:{EX+3}], v44, s[{rT1}:{rT1+3}], 0 offen
    buffer_load_dwordx4 v[{EX+4}:{EX+7}], v44, s[{rT1}:{rT1+3}], s{sT3} offen
    v_bfe_u32 v46, v{vLANE}, 3, 1
    v_mul_u32_u24 v46, 896, v46
    v_lshrrev_b32 v47, 4, v{vLANE}
    v_lshl_add_u32 v46, v47, 2, v46
    buffer_load_dword v{EX+8}, v46, s[{rT2}:{rT2+3}], s{sT1} offen
    buffer_load_dword v{EX+9}, v46, s[{rT2}:{rT2+3}], s{sT1} offen offset:16
    ''')
    wq_mark = a.vm_mark()
    srd(a, rK, sK, f's{sT0}', 32768)
    srd(a, rV, sV, f's{sT0}', 32768)
    a('s_barrier')
    for n in range(cfg.k0): kv_load(rK, n >> 1, n & 1, kseq)
    masks(a, vLANE, 44)
    a(f's_mov_b32 s{sT4}, 0x01000100\ns_mov_b32 s{sT5}, 0x03020302')
    a.vm_wait(wq_mark)
    stamp(a, 1)
    for u in range(2):
        for rs in range(2):
            a(f'v_perm_b32 v44, v{EX+8+u}, v{EX+8+u}, s{sT4 if rs == 0 else sT5}')
            for j in range(4): a(f'v_and_b32 v{vA+j}, v44, v{vM+j}')
            d = vACC + 4*rs
            c = '0' if u == 0 else f'v[{d}:{d+3}]'
            a(f'v_mfma_f32_16x16x32_bf16 v[{d}:{d+3}], v[{vA}:{vA+3}], v[{EX+4*u}:{EX+4*u+3}], {c}')
    a(f'''
    v_bfe_u32 v45, v{vLANE}, 3, 1
    v_cmp_eq_u32 vcc, 1, v45
    v_lshrrev_b32 v46, 5, v{vLANE}
    v_lshlrev_b32 v46, 8, v46
    v_and_b32 v47, 7, v{vLANE}
    v_lshl_add_u32 v46, v47, 5, v46
    v_bfe_u32 v47, v{vLANE}, 4, 1
    v_lshl_add_u32 v46, v47, 4, v46
    s_lshl_b32 s{sT1}, s{sWAVE}, 9
    s_sub_u32 s{sT1}, s{sT1}, 512
    v_add_u32 v46, s{sT1}, v46
    ''')
    for r in range(4): a(f'v_cndmask_b32 v{vACC+r}, v{vACC+r}, v{vACC+4+r}, vcc')
    for r in range(4): a(f'v_add_f32_dpp v{vACC+r}, v{vACC+r}, v{vACC+r} row_ror:8 row_mask:0xf bank_mask:0xf')
    a(f'''
    ds_write_b128 v46, v[{vACC}:{vACC+3}] offset:{L_QPART}
    s_waitcnt lgkmcnt(0)
    s_barrier
    s_cmp_lg_u32 s{sWAVE}, 1
    s_cbranch_scc1 L_krest
    v_lshlrev_b32 v44, 4, v{vLANE}
    s_mov_b32 exec_hi, 0
    ''')
    for i in range(7):
        a(f'ds_read_b128 v[{EX+4*i}:{EX+4*i+3}], v44 offset:{L_QPART + 512*i}')
    a(f's_add_u32 s{sT1}, s{sREC}, {R_QP}')
    a('s_waitcnt lgkmcnt(0)')
    for (x, y) in ((0, 1), (2, 3), (4, 5), (0, 2), (4, 6), (0, 4)):
        for r in range(4): a(f'v_add_f32 v{EX+4*x+r}, v{EX+4*x+r}, v{EX+4*y+r}')
    a(f'''
    buffer_store_dwordx4 v[{EX}:{EX+3}], v44, s[{rWS}:{rWS+3}], s{sT1} offen sc1
    s_mov_b32 exec_hi, -1
    s_branch L_krest
    ''')
    a.label('L_service')
    a(f'''
    v_mov_b32 v{EX}, -1
    v_mov_b32 v{EX+1}, -1
    v_mov_b32 v{EX+2}, -1
    v_mov_b32 v{EX+3}, -1
    v_lshlrev_b32 v44, 4, v{vLANE}
    buffer_store_dwordx4 v[{EX}:{EX+3}], v44, s[{rWS}:{rWS+3}], s{sREC} offen sc1
    buffer_store_dwordx4 v[{EX}:{EX+3}], v44, s[{rWS}:{rWS+3}], s{sREC} offen offset:1024 sc1
    buffer_store_dwordx4 v[{EX}:{EX+3}], v44, s[{rWS}:{rWS+3}], s{sREC} offen offset:2048 sc1
    v_mov_b32 v45, 0
    ds_write_b32 v45, v45 offset:{L_FLAG}
    v_lshlrev_b32 v46, 2, v{vLANE}
    s_mov_b64 exec, 0xffff
    ds_write_b32 v46, v{EX} offset:{L_MLW}
    s_mov_b64 exec, -1
    ''')
    srd(a, rK, sK, f's{sT0}', 32768)
    srd(a, rV, sV, f's{sT0}', 32768)
    a(f'''
    s_barrier
    s_lshl_b32 s{sT1}, s{sH}, 4
    v_mov_b32 v46, 1
    s_waitcnt vmcnt(0) lgkmcnt(0)
    buffer_atomic_add v46, v45, s[{rDBG}:{rDBG+3}], s{sT1} offen sc1
    '''.replace('buffer_atomic_add', 's_mov_b64 exec, 1\n    buffer_atomic_add') + 's_mov_b64 exec, -1\n')
    stamp(a, 1)
    a('s_barrier')
    masks(a, vLANE, 46)
    a('v_mov_b32 v45, 0')
    l, d = spin_head(a)
    a(f'''
    buffer_load_dword v47, v45, s[{rDBG}:{rDBG+3}], s{sT1} offen sc1
    s_waitcnt vmcnt(0)
    v_readfirstlane_b32 s{sT2}, v47
    s_cmp_ge_u32 s{sT2}, 16
    s_cbranch_scc1 {d}
    ''')
    spin_tail(a, l, d)
    stamp(a, 2)
    a(f'''
    v_lshrrev_b32 v44, 4, v{vLANE}
    v_and_b32 v45, 15, v{vLANE}
    v_lshlrev_b32 v45, 4, v45
    v_lshl_add_u32 v44, v44, 16, v45
    s_lshl_b32 s{sT1}, s{sWBASE}, 12
    s_lshl_b32 s{sT2}, s{sB}, 8
    s_add_u32 s{sT1}, s{sT1}, s{sT2}
    s_add_u32 s{sT1}, s{sT1}, {R_QP}
    s_add_u32 s{sT2}, s{sT1}, {4*65536}
    s_add_u32 s{sT3}, s{sT1}, {8*65536}
    s_add_u32 s{sT4}, s{sT1}, {12*65536}
    ''')
    l, d = spin_head(a)
    for cq in range(4):
        a(f'buffer_load_dwordx4 v[{EX+4*cq}:{EX+4*cq+3}], v44, s[{rWS}:{rWS+3}], s{sT1+cq} offen sc1')
    a('s_waitcnt vmcnt(0)')
    a(f'v_max3_u32 v46, v{EX}, v{EX+1}, v{EX+2}')
    for i in range(3, 15, 2): a(f'v_max3_u32 v46, v46, v{EX+i}, v{EX+i+1}')
    a(f'''
    v_max_u32 v46, v46, v{EX+15}
    v_cmp_eq_u32 vcc, -1, v46
    s_cbranch_vccz {d}
    ''')
    spin_tail(a, l, d)
    stamp(a, 3)
    for i in range(4):
        a(f'v_permlane32_swap_b32 v{EX+i}, v{EX+4+i}')
        a(f'v_permlane32_swap_b32 v{EX+8+i}, v{EX+12+i}')
    for i in range(4):
        a(f'v_add_f32 v{EX+i}, v{EX+i}, v{EX+4+i}')
        a(f'v_add_f32 v{EX+8+i}, v{EX+8+i}, v{EX+12+i}')
    for i in range(4): a(f'v_permlane16_swap_b32 v{EX+i}, v{EX+8+i}')
    for i in range(4): a(f'v_add_f32 v{EX+i}, v{EX+i}, v{EX+8+i}')
    a(f'''
    v_cvt_pk_bf16_f32 v{EX}, v{EX}, v{EX+1}
    v_cvt_pk_bf16_f32 v{EX+1}, v{EX+2}, v{EX+3}
    v_bfe_u32 v45, v{vLANE}, 4, 1
    v_lshlrev_b32 v45, 8, v45
    v_lshrrev_b32 v46, 5, v{vLANE}
    v_lshl_add_u32 v45, v46, 7, v45
    v_and_b32 v46, 15, v{vLANE}
    v_lshl_add_u32 v45, v46, 3, v45
    ds_write_b64 v45, v[{EX}:{EX+1}] offset:{L_QB}
    v_mov_b32 v46, 0
    v_mov_b32 v47, 1
    s_waitcnt lgkmcnt(0)
    ds_write_b32 v46, v47 offset:{L_FLAG}
    ''')
    for n in range(cfg.k0): kv_load(rK, n >> 1, n & 1, {})
    a.label('L_krest')
    base = a.vm_issued
    for n in range(cfg.k0): kseq[(n >> 1, n & 1)] = base - cfg.k0 + n
    for n in range(cfg.k0, 32): kv_load(rK, n >> 1, n & 1, kseq)
    a('v_mov_b32 v46, 0')
    l, d = spin_head(a)
    a(f'''
    ds_read_b32 v47, v46 offset:{L_FLAG}
    s_waitcnt lgkmcnt(0)
    v_readfirstlane_b32 s{sT2}, v47
    s_cmp_eq_u32 s{sT2}, 1
    s_cbranch_scc1 {d}
    s_sleep 2
    ''')
    a(f'''
    s_add_u32 s{sSPIN}, s{sSPIN}, 1
    s_cmp_lt_u32 s{sSPIN}, {cfg.spin*16}
    s_cbranch_scc1 {l}
    ''')
    a.label(d)
    a(f'''
    v_and_b32 v44, 15, v{vLANE}
    v_lshlrev_b32 v44, 4, v44
    ds_read_b128 v[{vQ}:{vQ+3}], v44 offset:{L_QB}
    ds_read_b128 v[{vQ+4}:{vQ+7}], v44 offset:{L_QB+256}
    s_waitcnt lgkmcnt(0)
    ''')
    stamp(a, 4)
    S = vS
    for qd in range(4):
        ts = [4*qd + i for i in range(4)]
        a.vm_wait(kseq[(ts[-1], 1)])
        for k in range(4):
            for i, t in enumerate(ts):
                r = KV + 8*t
                c0 = '0' if k == 0 else f'v{S+t}'
                c1 = '0' if k == 0 else f'v{44+i}'
                a(f'v_dot2_f32_bf16 v{S+t}, v{r+k}, v{vQ+k}, {c0}')
                a(f'v_dot2_f32_bf16 v{44+i}, v{r+4+k}, v{vQ+4+k}, {c1}')
        for t in ts:
            if t < cfg.nv0:
                for hf in range(2): kv_load(rV, t, hf, vseq)
        for i, t in enumerate(ts): a(f'v_add_f32 v{S+t}, v{S+t}, v{44+i}')
        for ror in (8, 4, 2, 1):
            for t in ts:
                a(f'v_add_f32_dpp v{S+t}, v{S+t}, v{S+t} row_ror:{ror} row_mask:0xf bank_mask:0xf')
    stamp(a, 5)
    a(f'''
    v_max3_f32 v44, v{S}, v{S+1}, v{S+2}
    v_max3_f32 v45, v{S+3}, v{S+4}, v{S+5}
    v_max3_f32 v46, v{S+6}, v{S+7}, v{S+8}
    v_max3_f32 v47, v{S+9}, v{S+10}, v{S+11}
    v_max3_f32 v44, v44, v{S+12}, v{S+13}
    v_max3_f32 v45, v45, v{S+14}, v{S+15}
    v_max3_f32 v44, v44, v45, v46
    v_max_f32 v44, v44, v47
    v_mov_b32 v45, v44
    v_permlane32_swap_b32 v44, v45
    v_max_f32 v44, v44, v45
    v_mov_b32 v45, v44
    v_permlane16_swap_b32 v44, v45
    v_max_f32 v44, v44, v45
    s_mov_b32 s{sT1}, {f2u(LOG2E/16.0):#x}
    v_mul_f32 v58, s{sT1}, v44
    ''')
    for t in range(16): a(f'v_fma_f32 v{S+t}, v{S+t}, s{sT1}, -v58')
    for t in range(16): a(f'v_exp_f32 v{S+t}, v{S+t}')
    for t in range(16): a(f'v_cvt_pk_bf16_f32 v{S+t}, v{S+t}, v{S+t}')
    a('v_mov_b32 v60, 0x3f80')
    for t in range(16):
        dst = 59 if t % 2 == 0 else 61
        c = '0' if t < 2 else f'v{dst}'
        a(f'v_dot2_f32_bf16 v{dst}, v{S+t}, v60, {c}')
    a(f'''
    v_add_f32 v59, v59, v61
    v_mov_b32 v45, v59
    v_permlane32_swap_b32 v59, v45
    v_add_f32 v59, v59, v45
    v_mov_b32 v45, v59
    v_permlane16_swap_b32 v59, v45
    v_add_f32 v59, v59, v45
    s_lshl_b32 s{sT1}, s{sWAVE}, 3
    v_mov_b32 v46, s{sT1}
    ds_write_b64 v46, v[58:59] offset:{L_MLW}
    ''')
    for t in range(16):
        for j in range(4): a(f'v_and_b32 v{vA+j}, v{S+t}, v{vM+j}')
        r = KV + 8*t
        for hf in range(2):
            a.vm_wait(vseq[(t, hf)])
            acc = vACC + 4*hf
            c = '0' if t == 0 else f'v[{acc}:{acc+3}]'
            a(f'v_mfma_f32_16x16x32_bf16 v[{acc}:{acc+3}], v[{vA}:{vA+3}], v[{r+4*hf}:{r+4*hf+3}], {c}')
        tn = t + cfg.nv0
        if tn < 16:
            for hf in range(2): kv_load(rV, tn, hf, vseq)
    stamp(a, 6)
    a(f'''
    v_and_b32 v44, 15, v{vLANE}
    v_lshrrev_b32 v45, 4, v{vLANE}
    v_lshlrev_b32 v44, 5, v44
    v_lshl_add_u32 v44, v45, 4, v44
    s_lshl_b32 s{sT1}, s{sWAVE}, 10
    v_add_u32 v48, s{sT1}, v44
    s_mov_b32 exec_hi, 0
    ds_write_b128 v48, v[{vACC}:{vACC+3}] offset:{L_OPART}
    ds_write_b128 v48, v[{vACC+4}:{vACC+7}] offset:{L_OPART+512}
    s_mov_b32 exec_hi, -1
    s_cmp_ge_u32 s{sWAVE}, 4
    s_cbranch_scc1 L_young
    ''')
    a(f'''
    s_lshr_b32 s{sT0}, s{sJ}, 2
    s_lshl_b32 s{sT1}, s{sH}, 2
    s_add_u32 s{sT0}, s{sT0}, s{sT1}
    s_and_b32 s{sJ}, s{sJ}, 3
    ''')
    sFS, sCB = sT0, sJ
    a(f's_mul_i32 s{sT1}, s{sFS}, {64*896}')
    srd(a, rT1, sWO, f's{sT1}', 64*896)
    srd(a, rT2, sX, None, 1792)
    srd(a, rT3, sGATE, None, 896)
    a(f'''
    v_lshrrev_b32 v46, 4, v{vLANE}
    v_and_b32 v47, 15, v{vLANE}
    v_lshlrev_b32 v47, 4, v47
    s_mul_i32 s{sT1}, s{sCB}, 224
    v_add_u32 v47, s{sT1}, v47
    s_lshl_b32 s{sT1}, s{sWAVE}, 2
    v_add_u32 v49, s{sT1}, v46
    v_mul_u32_u24 v49, {4*896}, v49
    v_add_u32 v49, v49, v47
    v_lshlrev_b32 v50, 4, v{vLANE}
    buffer_load_dwordx4 v[{EX+16}:{EX+19}], v50, s[{rT2}:{rT2+3}], 0 offen
    buffer_load_dwordx4 v[{EX+20}:{EX+23}], v50, s[{rT2}:{rT2+3}], 0 offen offset:896
    buffer_load_dwordx4 v[{EX+24}:{EX+27}], v50, s[{rT3}:{rT3+3}], 0 offen
    ''')
    gate_mark = a.vm_mark()
    for t in range(4):
        a(f'buffer_load_dwordx4 v[{EX+4*t}:{EX+4*t+3}], v49, s[{rT1}:{rT1+3}], 0 offen offset:{896*t}')
    a(f'''
    s_cmp_eq_u32 s{sWAVE}, 1
    s_cbranch_scc1 L_ffn
    v_mov_b32 v12, 0
    v_mov_b32 v13, 0
    v_mov_b32 v14, 0
    v_mov_b32 v15, 0
    s_branch L_ffn_done
    ''')
    a.label('L_ffn')
    a(f'''
    s_cmp_lt_u32 s{sFS}, 56
    s_cselect_b32 s{sT5}, -1, 0
    s_lshl_b32 s{sT1}, s{sFS}, 6
    ''')
    srd(a, rT1, sW1, f's{sT1}', 447*3584+64)
    a(f's_and_b32 s{rT1+2}, s{rT1+2}, s{sT5}')
    a(f'''
    v_lshrrev_b32 v51, 2, v{vLANE}
    v_mul_u32_u24 v52, 56, v51
    v_mul_u32_u24 v51, {28*3584}, v51
    v_and_b32 v53, 3, v{vLANE}
    v_lshl_add_u32 v51, v53, 4, v51
    ''')
    XP = 176
    XQ = 222
    for (base, off) in ((XP, 0), (XQ, 896)):
        a(f'buffer_load_dwordx4 v[{base}:{base+3}], v52, s[{rT2}:{rT2+3}], 0 offen offset:{off}')
        a(f'buffer_load_dwordx4 v[{base+4}:{base+7}], v52, s[{rT2}:{rT2+3}], 0 offen offset:{off+16}')
        a(f'buffer_load_dwordx4 v[{base+8}:{base+11}], v52, s[{rT2}:{rT2+3}], 0 offen offset:{off+32}')
        a(f'buffer_load_dwordx2 v[{base+12}:{base+13}], v52, s[{rT2}:{rT2+3}], 0 offen offset:{off+48}')
    a(f's_mov_b32 s{sT1}, 0')
    w1seq = []
    for n in range(28):
        r = KV + 4*n
        a(f'buffer_load_dwordx4 v[{r}:{r+3}], v51, s[{rT1}:{rT1+3}], s{sT1} offen offset:{3584*(n&1)}')
        w1seq.append(a.vm_mark())
        if n & 1 and n < 27: a(f's_add_u32 s{sT1}, s{sT1}, 7168')
    a(f's_lshl_b32 s{sT1}, s{sFS}, 6')
    srd(a, rT3, sB1, f's{sT1}', 64)
    a(f's_and_b32 s{rT3+2}, s{rT3+2}, s{sT5}')
    a(f'''
    v_lshlrev_b32 v53, 4, v53
    v_bfe_u32 v54, v{vLANE}, 4, 1
    v_lshl_add_u32 v53, v54, 3, v53
    buffer_load_dwordx2 v[56:57], v53, s[{rT3}:{rT3+3}], 0 offen
    ''')
    srd(a, rT3, sB2, None, 896)
    a(f'''
    s_cmp_eq_u32 s{sFS}, 0
    s_cselect_b32 s{rT3+2}, 896, 0
    v_lshl_add_u32 v54, v54, 3, v47
    v_mov_b32 v55, v47
    buffer_load_dwordx2 v[62:63], v54, s[{rT3}:{rT3+3}], 0 offen
    ''')
    small_mark = a.vm_mark()
    ACC = 190
    ACC = 28
    a(f's_mov_b32 s{sT2}, 0x05040100\ns_mov_b32 s{sT3}, 0x07060302')
    for p in range(14):
        a.vm_wait(w1seq[2*p+1])
        for q in range(4):
            w0 = KV + 8*p + q; w1_ = w0 + 4
            a(f'v_perm_b32 v{44+2*(q&1)}, v{w1_}, v{w0}, s{sT2}')
            a(f'v_perm_b32 v{45+2*(q&1)}, v{w1_}, v{w0}, s{sT3}')
            for b in range(2):
                for e in range(2):
                    dd = ACC + b*8 + 2*q + e
                    c = '0' if p == 0 else f'v{dd}'
                    a(f'v_dot2_f32_bf16 v{dd}, v{44+2*(q&1)+e}, v{(XP if b == 0 else XQ)+p}, {c}')
    a(f's_mul_i32 s{sT1}, s{sFS}, {32*896}')
    srd(a, rT1, sW2, f's{sT1}', 32*896)
    a(f'''
    s_and_b32 s{rT1+2}, s{rT1+2}, s{sT5}
    v_lshrrev_b32 v46, 4, v{vLANE}
    v_mul_u32_u24 v46, 896, v46
    v_add_u32 v46, v46, v55
    s_mov_b32 s{sT1}, 0
    ''')
    w2seq = []
    for u in range(8):
        a(f'buffer_load_dwordx4 v[{KV+4*u}:{KV+4*u+3}], v46, s[{rT1}:{rT1+3}], s{sT1} offen offset:{3584*(u&1)}')
        w2seq.append(a.vm_mark())
        if u & 1 and u < 7: a(f's_add_u32 s{sT1}, s{sT1}, 7168')
    for f in range(8): a(f'v_permlane32_swap_b32 v{ACC+f}, v{ACC+8+f}')
    for f in range(8): a(f'v_add_f32 v{ACC+f}, v{ACC+f}, v{ACC+8+f}')
    for f in range(4): a(f'v_permlane16_swap_b32 v{ACC+f}, v{ACC+4+f}')
    for f in range(4): a(f'v_add_f32 v{ACC+f}, v{ACC+f}, v{ACC+4+f}')
    for ror in (4, 8):
        for f in range(4):
            a(f'v_add_f32_dpp v{ACC+f}, v{ACC+f}, v{ACC+f} row_ror:{ror} row_mask:0xf bank_mask:0xf')
    a.vm_wait(small_mark)
    a(f'''
    v_lshlrev_b32 v36, 16, v56
    v_and_b32 v37, 0xffff0000, v56
    v_lshlrev_b32 v38, 16, v57
    v_and_b32 v39, 0xffff0000, v57
    ''')
    for f in range(4): a(f'v_add_f32 v{ACC+f}, v{ACC+f}, v{36+f}')
    c1 = -2*0.7978845608028654*LOG2E
    a(f's_mov_b32 s{sT2}, {f2u(c1*0.044715):#x}')
    for f in range(4): a(f'v_mul_f32 v{36+f}, v{ACC+f}, v{ACC+f}')
    a(f'v_mov_b32 v40, {f2u(c1):#x}')
    for f in range(4): a(f'v_fma_f32 v{36+f}, v{36+f}, s{sT2}, v40')
    for f in range(4): a(f'v_mul_f32 v{36+f}, v{36+f}, v{ACC+f}')
    for f in range(4): a(f'v_exp_f32 v{36+f}, v{36+f}')
    for f in range(4): a(f'v_add_f32 v{36+f}, 1.0, v{36+f}')
    for f in range(4): a(f'v_rcp_f32 v{36+f}, v{36+f}')
    for f in range(4): a(f'v_mul_f32 v{ACC+f}, v{ACC+f}, v{36+f}')
    for f in range(4): a(f'v_cvt_pk_bf16_f32 v{ACC+f}, v{ACC+f}, v{ACC+f}')
    a(f'''
    v_lshrrev_b32 v36, 5, v{vLANE}
    v_lshlrev_b32 v36, 7, v36
    v_and_b32 v37, 3, v{vLANE}
    v_lshl_add_u32 v36, v37, 5, v36
    v_bfe_u32 v37, v{vLANE}, 4, 1
    v_lshl_add_u32 v36, v37, 4, v36
    ds_write_b128 v36, v[{ACC}:{ACC+3}] offset:{L_H1}
    v_bfe_u32 v48, v{vLANE}, 3, 1
    v_lshlrev_b32 v48, 5, v48
    v_lshrrev_b32 v38, 4, v{vLANE}
    v_add_u32 v48, v48, v38
    v_lshlrev_b32 v48, 2, v48
    s_waitcnt lgkmcnt(0)
    ''')
    for u in range(8): a(f'ds_read_b32 v{36+u}, v48 offset:{L_H1 + 16*u}')
    a(f'''
    v_lshlrev_b32 v12, 16, v62
    v_and_b32 v13, 0xffff0000, v62
    v_lshlrev_b32 v14, 16, v63
    v_and_b32 v15, 0xffff0000, v63
    s_waitcnt lgkmcnt(0)
    ''')
    for u in range(8):
        src = 36+u
        for j in range(4): a(f'v_and_b32 v{vA+j}, v{src}, v{vM+j}')
        a.vm_wait(w2seq[u])
        a(f'v_mfma_f32_16x16x32_bf16 v[12:15], v[{vA}:{vA+3}], v[{KV+4*u}:{KV+4*u+3}], v[12:15]')
    a.label('L_ffn_done')
    a('s_waitcnt vmcnt(0)')
    stamp(a, 7)
    X0, X1, GW = EX+16, EX+20, EX+24
    for b in range(2):
        for k in range(4):
            c = '0' if k == 0 else f'v{46+b}'
            a(f'v_dot2_f32_bf16 v{46+b}, v{(X0 if b == 0 else X1)+k}, v{GW+k}, {c}')
    a('v_permlane32_swap_b32 v46, v47\nv_add_f32 v46, v46, v47')
    for ror in (8, 4, 2, 1):
        a(f'v_add_f32_dpp v46, v46, v46 row_ror:{ror} row_mask:0xf bank_mask:0xf')
    a(f'''
    v_mov_b32 v47, v46
    v_permlane16_swap_b32 v46, v47
    v_add_f32 v46, v46, v47
    v_mul_f32 v46, {f2u(-LOG2E):#x}, v46
    v_exp_f32 v46, v46
    v_add_f32 v46, 1.0, v46
    v_rcp_f32 v46, v46
    v_readlane_b32 s{sG0}, v46, 0
    v_readlane_b32 s{sG1}, v46, 32
    v_sub_f32 v47, 1.0, v46
    ''')
    for r in range(4): a(f'v_mul_f32 v{12+r}, v{12+r}, v47')
    a('v_mov_b32 v46, 0')
    l, d = spin_head(a)
    for i in range(4): a(f'ds_read_b128 v[{28+4*i}:{31+4*i}], v46 offset:{L_MLW+16*i}')
    a('s_waitcnt lgkmcnt(0)')
    a('v_max3_u32 v47, v28, v29, v30')
    for i in range(31, 43, 2): a(f'v_max3_u32 v47, v47, v{i}, v{i+1}')
    a(f'''
    v_max_u32 v47, v47, v43
    v_cmp_eq_u32 vcc, -1, v47
    s_cbranch_vccz {d}
    s_sleep 4
    s_add_u32 s{sSPIN}, s{sSPIN}, 1
    s_cmp_lt_u32 s{sSPIN}, {cfg.spin*16}
    s_cbranch_scc1 {l}
    ''')
    a.label(d)
    a('''
    v_max3_f32 v58, v28, v30, v32
    v_max3_f32 v58, v58, v34, v36
    v_max3_f32 v58, v58, v38, v40
    v_max_f32 v58, v58, v42
    ''')
    for w in range(8): a(f'v_sub_f32 v{28+2*w}, v{28+2*w}, v58')
    for w in range(8): a(f'v_exp_f32 v{28+2*w}, v{28+2*w}')
    a('v_mul_f32 v59, v28, v29')
    for w in range(1, 8): a(f'v_fma_f32 v59, v{28+2*w}, v{29+2*w}, v59')
    skip = newlabel('noml')
    a(f'''
    s_cmp_lg_u32 s{sWAVE}, 0
    s_cbranch_scc1 {skip}
    s_add_u32 s{sT1}, s{sREC}, {R_ML}
    v_mov_b32 v46, 0
    s_mov_b64 exec, 1
    buffer_store_dwordx2 v[58:59], v46, s[{rWS}:{rWS+3}], s{sT1} offen sc1
    s_mov_b64 exec, -1
    ''')
    a(f'''
    s_cmp_ge_u32 s2, 32
    s_cbranch_scc1 {skip}
    v_and_b32 v46, 15, v{vLANE}
    v_lshlrev_b32 v46, 4, v46
    ''')
    l, d = spin_head(a)
    a(f'''
    buffer_load_dword v47, v46, s[{rDBG}:{rDBG+3}], 0 offen sc1
    s_waitcnt vmcnt(0)
    v_cmp_gt_u32 vcc, 16, v47
    s_cbranch_vccz {d}
    ''')
    spin_tail(a, l, d)
    a.label(skip)
    a(f'''
    v_bfe_u32 v46, v{vLANE}, 3, 1
    v_and_b32 v47, 7, v{vLANE}
    v_lshl_add_u32 v46, v47, 1, v46
    v_lshlrev_b32 v46, 16, v46
    s_lshl_b32 s{sT1}, s{sWBASE}, 12
    s_add_u32 s{sT2}, s{sT1}, {R_ML}
    ''')
    l, d = spin_head(a)
    a(f'''
    buffer_load_dwordx2 v[44:45], v46, s[{rWS}:{rWS+3}], s{sT2} offen sc1
    s_waitcnt vmcnt(0)
    v_max_u32 v47, v44, v45
    v_cmp_eq_u32 vcc, -1, v47
    s_cbranch_vccz {d}
    ''')
    spin_tail(a, l, d)
    def allred8(op, r):
        for mode in ('quad_perm:[1,0,3,2]', 'quad_perm:[2,3,0,1]', 'row_half_mirror'):
            a(f'{op}_dpp v{r}, v{r}, v{r} {mode} row_mask:0xf bank_mask:0xf')
    a('v_mov_b32 v47, v44')
    allred8('v_max_f32', 47)
    a('''
    v_sub_f32 v44, v44, v47
    v_exp_f32 v44, v44
    s_nop 0
    v_mul_f32 v45, v44, v45
    ''')
    allred8('v_add_f32', 45)
    a(f'''
    v_rcp_f32 v45, v45
    v_bfe_u32 v47, v{vLANE}, 3, 1
    v_cmp_eq_u32 vcc, 1, v47
    v_mov_b32 v47, s{sG0}
    v_mov_b32 v49, s{sG1}
    v_cndmask_b32 v47, v47, v49, vcc
    v_mul_f32 v44, v44, v45
    v_mul_f32 v60, v44, v47
    ''')
    a(f'''
    v_lshrrev_b32 v47, 4, v{vLANE}
    v_lshl_add_u32 v61, v47, 4, v46
    s_and_b32 s{sT2}, s{sFS}, 3
    s_lshl_b32 s{sT2}, s{sT2}, 8
    s_add_u32 s{sT1}, s{sT1}, s{sT2}
    s_lshl_b32 s{sT2}, s{sWAVE}, 6
    s_add_u32 s{sT1}, s{sT1}, s{sT2}
    v_lshlrev_b32 v49, 2, v0
    s_waitcnt lgkmcnt(0)
    ''')
    stamp(a, 8)
    a('s_barrier')
    for i in range(4):
        a(f'ds_read2st64_b32 v[{50+2*i}:{51+2*i}], v49 offset0:{L_OPART//256 + 8*i} offset1:{L_OPART//256 + 8*i+4}')
    a('s_waitcnt lgkmcnt(0)')
    a('v_mul_f32 v50, v50, v28')
    for w in range(1, 8): a(f'v_fma_f32 v50, v{50+w}, v{28+2*w}, v50')
    a(f'buffer_store_dword v50, v49, s[{rWS}:{rWS+3}], s{sREC} offen sc1')
    l, d = spin_head(a)
    a(f'''
    buffer_load_dwordx4 v[44:47], v61, s[{rWS}:{rWS+3}], s{sT1} offen sc1
    s_waitcnt vmcnt(0)
    v_max3_u32 v52, v44, v45, v46
    v_max_u32 v52, v52, v47
    v_cmp_eq_u32 vcc, -1, v52
    s_cbranch_vccz {d}
    ''')
    spin_tail(a, l, d)
    for t in range(4): a(f'v_mul_f32 v{44+t}, v{44+t}, v60')
    for mode in ('quad_perm:[1,0,3,2]', 'quad_perm:[2,3,0,1]', 'row_half_mirror'):
        for t in range(4):
            a(f'v_add_f32_dpp v{44+t}, v{44+t}, v{44+t} {mode} row_mask:0xf bank_mask:0xf')
    for t in range(4): a(f'v_cvt_pk_bf16_f32 v{44+t}, v{44+t}, v{44+t}')
    for t in range(4):
        base = vA if t % 2 == 0 else 52
        for j in range(4): a(f'v_and_b32 v{base+j}, v{44+t}, v{vM+j}')
        a(f'v_mfma_f32_16x16x32_bf16 v[12:15], v[{base}:{base+3}], v[{EX+4*t}:{EX+4*t+3}], v[12:15]')
    a(f'''
    v_lshlrev_b32 v48, 4, v{vLANE}
    s_lshl_b32 s{sT1}, s{sWAVE}, 10
    v_add_u32 v49, s{sT1}, v48
    ds_write_b128 v49, v[12:15] offset:{L_R2}
    s_waitcnt lgkmcnt(0)
    s_barrier
    s_cmp_lg_u32 s{sWAVE}, 0
    s_cbranch_scc1 L_after_o2
    ''')
    for i in range(4): a(f'ds_read_b128 v[{28+4*i}:{31+4*i}], v48 offset:{L_R2+1024*i}')
    a(f'''
    v_and_b32 v50, 15, v{vLANE}
    v_bfe_u32 v51, v{vLANE}, 4, 1
    v_lshlrev_b32 v52, 1, v50
    v_add_u32 v52, v52, v51
    v_mul_u32_u24 v53, 37, v52
    v_lshrrev_b32 v53, 8, v53
    v_add_u32 v52, v52, v53
    v_lshlrev_b32 v52, 4, v52
    v_lshrrev_b32 v53, 5, v{vLANE}
    v_lshl_add_u32 v52, v53, 9, v52
    s_add_u32 s{sT1}, s{sREC}, {R_O2}
    v_cmp_gt_u32 vcc, 14, v50
    s_waitcnt lgkmcnt(0)
    ''')
    for r in range(4): a(f'v_add_f32 v{28+r}, v{28+r}, v{32+r}')
    for r in range(4): a(f'v_add_f32 v{36+r}, v{36+r}, v{40+r}')
    for r in range(4): a(f'v_add_f32 v{28+r}, v{28+r}, v{36+r}')
    a(f'''
    s_and_b64 exec, exec, vcc
    buffer_store_dwordx4 v[28:31], v52, s[{rWS}:{rWS+3}], s{sT1} offen sc1
    s_mov_b64 exec, -1
    s_branch L_after_o2
    ''')
    a.label('L_young')
    a(f'''
    s_waitcnt lgkmcnt(0)
    s_barrier
    s_cmp_ge_u32 s2, 32
    s_cbranch_scc1 L_fin
    s_barrier
    ''')
    a.label('L_after_o2')
    a(f'''
    s_cmp_ge_u32 s2, 32
    s_cbranch_scc1 L_fin
    ''')
    stamp(a, 9)
    a(f'''
    v_lshrrev_b32 v44, 6, v0
    v_bfe_u32 v45, v0, 3, 3
    v_lshl_add_u32 v44, v44, 3, v45
    v_lshrrev_b32 v45, 3, v44
    v_bfe_u32 v46, v44, 2, 1
    v_lshl_add_u32 v45, v46, 3, v45
    v_and_b32 v46, 3, v44
    v_lshl_add_u32 v45, v46, 6, v45
    v_lshlrev_b32 v45, 12, v45
    v_and_b32 v46, 7, v0
    v_lshl_add_u32 v45, v46, 4, v45
    s_bfe_u32 s{sT1}, s2, 0x20001
    s_lshl_b32 s{sT1}, s{sT1}, 16
    s_and_b32 s{sT2}, s2, 1
    s_lshl_b32 s{sT2}, s{sT2}, 9
    s_add_u32 s{sT1}, s{sT1}, s{sT2}
    s_bfe_u32 s{sT2}, s2, 0x20003
    s_lshl_b32 s{sT2}, s{sT2}, 7
    s_add_u32 s{sT1}, s{sT1}, s{sT2}
    s_add_u32 s{sT1}, s{sT1}, {R_O2}
    v_cmp_gt_u32 vcc, 7, v46
    s_mov_b64 s[{sT4}:{sT4+1}], vcc
    v_mov_b32 v48, 0
    v_mov_b32 v49, 0
    v_mov_b32 v50, 0
    v_mov_b32 v51, 0
    s_mov_b64 exec, s[{sT4}:{sT4+1}]
    ''')
    l, d = spin_head(a)
    a(f'''
    buffer_load_dwordx4 v[48:51], v45, s[{rWS}:{rWS+3}], s{sT1} offen sc1
    s_waitcnt vmcnt(0)
    v_max3_u32 v52, v48, v49, v50
    v_max_u32 v52, v52, v51
    v_cmp_eq_u32 vcc, -1, v52
    s_cbranch_vccz {d}
    ''')
    spin_tail(a, l, d)
    a('s_mov_b64 exec, -1')
    for r in range(4):
        a(f'v_add_f32_dpp v{48+r}, v{48+r}, v{48+r} row_ror:8 row_mask:0xf bank_mask:0xf')
    a(f'''
    v_permlane32_swap_b32 v48, v49
    v_permlane32_swap_b32 v50, v51
    v_add_f32 v48, v48, v49
    v_add_f32 v50, v50, v51
    v_permlane16_swap_b32 v48, v50
    v_add_f32 v48, v48, v50
    v_and_b32 v52, 7, v{vLANE}
    v_lshlrev_b32 v52, 2, v52
    v_bfe_u32 v53, v{vLANE}, 4, 1
    v_lshl_add_u32 v52, v53, 1, v52
    v_lshrrev_b32 v53, 5, v{vLANE}
    v_add_u32 v52, v52, v53
    v_lshlrev_b32 v52, 2, v52
    s_lshl_b32 s{sT2}, s{sWAVE}, 7
    v_add_u32 v52, s{sT2}, v52
    ds_write_b32 v52, v48 offset:{L_R3}
    s_waitcnt lgkmcnt(0)
    s_barrier
    s_cmp_lg_u32 s{sWAVE}, 0
    s_cbranch_scc1 L_fin
    v_and_b32 v52, 31, v{vLANE}
    v_lshlrev_b32 v53, 2, v52
    v_add_u32 v53, {L_R3}, v53
    ''')
    for i in range(4):
        a(f'ds_read2_b32 v[{28+2*i}:{29+2*i}], v53 offset0:{64*i} offset1:{64*i+32}')
    srd(a, rT1, sOUT, None, 1792)
    a(f'''
    s_and_b32 s{sT1}, s2, 1
    s_mul_i32 s{sT1}, s{sT1}, 896
    s_bfe_u32 s{sT2}, s2, 0x20001
    s_mul_i32 s{sT2}, s{sT2}, 224
    s_add_u32 s{sT1}, s{sT1}, s{sT2}
    s_bfe_u32 s{sT2}, s2, 0x20003
    s_mul_i32 s{sT2}, s{sT2}, 56
    s_add_u32 s{sT1}, s{sT1}, s{sT2}
    s_waitcnt lgkmcnt(0)
    v_add_f32 v28, v28, v29
    v_add_f32 v30, v30, v31
    v_add_f32 v32, v32, v33
    v_add_f32 v34, v34, v35
    v_add_f32 v28, v28, v30
    v_add_f32 v32, v32, v34
    v_add_f32 v28, v28, v32
    v_cvt_pk_bf16_f32 v28, v28, v28
    v_lshlrev_b32 v53, 1, v52
    s_mov_b64 exec, 0x0fffffff
    buffer_store_short v28, v53, s[{rT1}:{rT1+3}], s{sT1} offen
    ''')
    a.label('L_fin')
    if cfg.ts:
        a('s_waitcnt vmcnt(0)')
        a(f's_memrealtime s[{sTS+18}:{sTS+19}]' if False else '')
        a(f's_memrealtime s[{sG0}:{sG0+1}]')
        a('s_waitcnt lgkmcnt(0)')
        a(f's_mov_b32 s{sTS+1}, s{sG0}')
        stamp_flush(a, 10)
        a(f'v_mov_b32 v45, s{sTS+1}\nbuffer_store_dword v45, v44, s[{rWS}:{rWS+3}], s{sT0} offen offset:40')
    a.label('L_end')
    a('s_endpgm')
    return a

HEADER = open(os.path.join(os.path.dirname(__file__), '..', 'cdna_kernels', NAME + '.s.ref')).read().split('; Override launch')[0]

def emit(out):
    a = build()
    label = NAME + '_kernel'
    body = fmt(pad([l for l in a.lines if l], True))
    nv = 240
    txt = HEADER + f'; @launch grid=(256,1,1) block=(512,1,1) lds={L_END}\n'
    txt += f'''.amdgcn_target "amdgcn-amd-amdhsa--gfx950"
.text
.globl {label}
.p2align 8
.type {label},@function
{label}:
{body}
.section .rodata,"a"
.p2align 6
.amdhsa_kernel {label}
  .amdhsa_next_free_vgpr {nv}
  .amdhsa_next_free_sgpr 102
  .amdhsa_accum_offset {nv}
  .amdhsa_group_segment_fixed_size 0
  .amdhsa_kernarg_size 112
  .amdhsa_user_sgpr_count 2
  .amdhsa_user_sgpr_kernarg_segment_ptr 1
  .amdhsa_system_sgpr_workgroup_id_x 1
.end_amdhsa_kernel
'''
    open(out, 'w').write(txt)

if __name__ == '__main__':
    for o in sys.argv[2:]:
        if '=' in o:
            k, v = o.split('='); setattr(cfg, k, int(v, 0))
        elif o == 'ts': cfg.ts = True
        elif o == 'nont': cfg.nt = False
    emit(sys.argv[1])
```
